```python
import torch

def _softmax(x, axis=-1):
    return torch.softmax(x, dim=axis)
def _gelu(x):
    return torch.nn.functional.gelu(x, approximate="tanh")
def _silu(x):
    return torch.nn.functional.silu(x)
def _sigmoid(x):
    return torch.sigmoid(x)
def _layernorm(x, axis=-1, eps=1e-5):
    m = x.mean(dim=axis, keepdim=True)
    v = x.var(dim=axis, keepdim=True, unbiased=False)
    return (x - m) / torch.sqrt(v + eps)
def _scatter_add(tgt, idx, src, axis=0):
    return tgt.clone().index_add_(axis, idx, src)
def _segment_sum(src, seg, n):
    out = torch.zeros((n,) + src.shape[1:], dtype=src.dtype)
    return out.index_add_(0, seg, src)
def _pad(x, pw):
    flat = tuple(v for pair in reversed(pw) for v in pair)
    return torch.nn.functional.pad(x, flat)

kernel_name = 'recurrent_scan__linear_kernel_hedgehog__glu_gated_geglu__prompt'

def setup_inputs():

    _w = (lambda a: (lambda t: t.to(torch.bfloat16) if t.is_floating_point() else t)(torch.as_tensor(a)))
    def _A_setup():
        B, S, D, H = 1, 2048, 1024, 32
        Dh = D // H
        return {
            "x": _w((lambda *s: torch.randn(*s, dtype=torch.bfloat16) * 0.05)(B, S, D)),
            "wqkv": _w((lambda *s: torch.randn(*s, dtype=torch.bfloat16) * 0.8)(D, 3 * D)),
            "w_phi": _w((lambda *s: torch.randn(*s, dtype=torch.bfloat16) * 0.8)(H, Dh, Dh) * (Dh ** -0.5)),
            "wo": _w((lambda *s: torch.randn(*s, dtype=torch.bfloat16) * 0.8)(D, D)),
        }
    _A_in = _A_setup()

    def _B_setup():
        B, S, Dm, Df = 1, 2048, 1024, 3584
        return {
            "x": _w((lambda *s: torch.randn(*s, dtype=torch.bfloat16) * 0.05)(B, S, Dm)),
            "w_gate": _w((lambda *s: torch.randn(*s, dtype=torch.bfloat16) * 0.2)(Dm, Df) * (Dm ** -0.5)),
            "w_up": _w((lambda *s: torch.randn(*s, dtype=torch.bfloat16) * 0.2)(Dm, Df) * (Dm ** -0.5)),
            "w_down": _w((lambda *s: torch.randn(*s, dtype=torch.bfloat16) * 0.2)(Df, Dm) * (Df ** -0.5)),
        }
    _B_in = _B_setup()

    return {
        "A_x": _A_in["x"],
        "A_wqkv": _A_in["wqkv"],
        "A_w_phi": _A_in["w_phi"],
        "A_wo": _A_in["wo"],
        "B_x": _B_in["x"],
        "B_w_gate": _B_in["w_gate"],
        "B_w_up": _B_in["w_up"],
        "B_w_down": _B_in["w_down"],
    }

def reference(A_x, A_wqkv, A_w_phi, A_wo, B_x, B_w_gate, B_w_up, B_w_down):
    def _A_ref(x, wqkv, w_phi, wo):
        B, S, D = x.shape
        H = 32; Dh = D // H
        qkv = (lambda x, *d: x.permute(*d))((x @ wqkv).reshape(B, S, 3, H, Dh), 2, 0, 3, 1, 4)
        q, k, v = qkv[0], qkv[1], qkv[2]
        pq = torch.einsum("bhsd,hdf->bhsf", q, w_phi)
        pk = torch.einsum("bhsd,hdf->bhsf", k, w_phi)
        phi_q = torch.concatenate([_softmax(pq, axis=-1), _softmax(-pq, axis=-1)], axis=-1)
        phi_k = torch.concatenate([_softmax(pk, axis=-1), _softmax(-pk, axis=-1)], axis=-1)
        kv = torch.einsum("bhsf,bhsd->bhfd", phi_k, v)
        z  = torch.einsum("bhsf->bhf", phi_k)
        num = torch.einsum("bhqf,bhfd->bhqd", phi_q, kv)
        den = torch.einsum("bhqf,bhf->bhq", phi_q, z)[..., None] + 1e-6
        o = num / den
        return (lambda x, *d: x.permute(*d))(o, 0, 2, 1, 3).reshape(B, S, D) @ wo

    def _B_ref(x, w_gate, w_up, w_down):
        g = torch.einsum("bsd,df->bsf", x, w_gate)
        u = torch.einsum("bsd,df->bsf", x, w_up)
        h = _gelu(g) * u
        return torch.einsum("bsf,fd->bsd", h, w_down)

    x = A_x
    xn = _layernorm(x, axis=-1)
    s = _A_ref(xn, A_wqkv, A_w_phi, A_wo)
    g = _silu(_B_ref(xn, B_w_gate, B_w_up, B_w_down))
    return x + s * g
```

```python
import re

_REG = re.compile(r"(?<![\w.])([vas])(?:(\d+)|\[(\d+):(\d+)\])(?![\w])")
TRANS = ("v_exp_", "v_log_", "v_rcp_", "v_rsq_", "v_sqrt_", "v_sin_", "v_cos_")


def regs_of(tok):
    out = []
    for m in _REG.finditer(tok):
        k = m.group(1)
        if m.group(2) is not None:
            out.append((k, int(m.group(2))))
        else:
            out += [(k, i) for i in range(int(m.group(3)), int(m.group(4)) + 1)]
    if re.search(r"\bvcc\b", tok):
        out.append(("s", "vcc"))
    if re.search(r"\bm0\b", tok):
        out.append(("s", "m0"))
    if re.search(r"\bexec\b", tok):
        out.append(("s", "exec"))
    return out


def R(kind, base, n=1):
    return f"{kind}{base}" if n == 1 else f"{kind}[{base}:{base + n - 1}]"


def v(b, n=1):
    return R("v", b, n)


def a(b, n=1):
    return R("a", b, n)


def s(b, n=1):
    return R("s", b, n)


class Ins:
    __slots__ = ("text", "op", "ops", "dst", "src", "cls", "srcc", "passes", "dpp", "nstates")

    def __init__(self, text):
        self.text = text
        t = text.split(";")[0].strip()
        parts = t.split(None, 1)
        self.op = op = parts[0]
        rest = parts[1] if len(parts) > 1 else ""
        self.ops = ops = [x.strip() for x in rest.split(",")] if rest else []
        self.srcc = []
        self.passes = 0
        self.dpp = ("row_" in rest or "quad_perm" in rest or "wave_" in rest) and op.startswith("v_")
        self.nstates = 1
        rd = lambda i: regs_of(ops[i]) if i < len(ops) else []
        allr = lambda i0: [r for o in ops[i0:] for r in regs_of(o)]
        if op.endswith(":") or op.startswith("."):
            self.cls, self.dst, self.src, self.nstates = "meta", [], [], 0
        elif op.startswith("v_mfma"):
            self.cls = "sgemm" if op.endswith("_f32") else "xdl"
            self.dst, self.src, self.srcc = rd(0), rd(1) + rd(2), rd(3)
            if "16x16x32" in op:
                self.passes = 4
            elif "16x16x1_4b" in op or "16x16x4_f32" in op or "32x32x16" in op:
                self.passes = 8
            else:
                raise ValueError(op)
        elif op.startswith("ds_read") or op.startswith("ds_bpermute") or op.startswith("ds_swizzle"):
            self.cls, self.dst, self.src = "dsr", rd(0), allr(1)
        elif op.startswith("ds_write"):
            self.cls, self.dst, self.src = "dsw", [], allr(0)
        elif op.startswith("buffer_load") or op.startswith("global_load"):
            if re.search(r"\blds\b", rest) or "_lds_" in op:
                self.cls, self.dst, self.src = "dma", [], allr(0) + [("s", "m0")]
            else:
                self.cls, self.dst, self.src = "vld", rd(0), allr(1)
        elif op.startswith("buffer_store") or op.startswith("global_store") or "_atomic_" in op:
            self.cls, self.dst, self.src = "vst", [], allr(0)
            assert " sc0" not in rest or "_atomic_" not in op
        elif op.startswith("buffer_inv") or op.startswith("buffer_wbl2"):
            self.cls, self.dst, self.src = "vst", [], []
        elif op.startswith("s_load") or op.startswith("s_memtime") or op.startswith("s_memrealtime"):
            self.cls, self.dst, self.src = "smem", rd(0), allr(1)
        elif op.startswith("v_"):
            self.cls = "trans" if op.startswith(TRANS) else "valu"
            self.dst, self.src = rd(0), allr(1)
            if op.startswith("v_permlane") or op.startswith("v_swap"):
                self.dst = self.src = rd(0) + rd(1)
            elif op.startswith("v_fmac") or op.startswith("v_pk_fmac") or self.dpp or op.startswith("v_writelane"):
                self.src = self.src + self.dst
            elif op.startswith(("v_add_co", "v_addc_co", "v_sub_co", "v_subb_co")):
                self.dst, self.src = rd(0) + rd(1), allr(2)
        elif op == "s_nop":
            self.cls, self.dst, self.src, self.nstates = "salu", [], [], int(ops[0], 0) + 1
        elif op.startswith(("s_waitcnt", "s_barrier", "s_branch", "s_cbranch", "s_endpgm", "s_sleep", "s_setprio")):
            self.cls, self.dst, self.src = "ctl", [], []
        elif op.startswith(("s_cmp", "s_bitcmp")):
            self.cls, self.dst, self.src = "salu", [], allr(0)
        elif op.startswith("s_"):
            self.cls, self.dst, self.src = "salu", rd(0), allr(1)
            if "saveexec" in op:
                self.dst = self.dst + [("s", "exec")]
        else:
            raise ValueError("unknown instruction: " + text)


def need_states(p, c):
    n = 0
    pd = set(p.dst)
    c_reads = set(c.src) | set(c.srcc)
    c_all = c_reads | set(c.dst)
    valu_p = p.cls in ("valu", "trans")
    valu_c = c.cls in ("valu", "trans")
    mfma_c = c.cls in ("xdl", "sgemm")
    mem_c = c.cls in ("dsr", "dsw", "dma", "vld", "vst")
    if valu_p:
        pv = {r for r in pd if r[0] != "s"}
        ps = {r for r in pd if r[0] == "s"}
        if mfma_c and pv & c_reads:
            n = max(n, 2)
        if valu_c and (c.dpp or c.op.startswith("v_permlane")) and pv & c_reads:
            n = max(n, 2)
        if valu_c and c.op.startswith(("v_readlane", "v_readfirstlane")) and pv & c_reads:
            n = max(n, 1)
        if p.cls == "trans" and pv & c_reads:
            n = max(n, 1)
        if ps & c_reads:
            if valu_c:
                n = max(n, 4 if c.op.startswith(("v_readlane", "v_writelane")) else 2)
            elif mem_c:
                n = max(n, 5)
            else:
                n = max(n, 1)
    if p.cls in ("xdl", "sgemm"):
        big = {("xdl", 4): 8, ("xdl", 8): 12, ("sgemm", 8): 10}[(p.cls, p.passes)]
        if mfma_c:
            if pd & set(c.src):
                n = max(n, big)
            if pd & set(c.srcc):
                same = p.cls == c.cls and p.passes == c.passes and p.dst == c.srcc
                if not same:
                    if p.cls == "xdl":
                        n = max(n, {4: 6, 8: 10}[p.passes])
                    elif c.cls == "sgemm":
                        n = max(n, 8)
            elif pd & set(c.dst):
                n = max(n, big)
        elif (valu_c or mem_c) and pd & c_all:
            n = max(n, big)
        if p.cls == "xdl" and valu_c and set(p.srcc) & set(c.dst):
            n = max(n, {4: 3, 8: 7}[p.passes])
    if p.cls == "salu" and ("s", "m0") in pd and c.cls == "dma":
        n = max(n, 1)
    if p.cls == "salu" and ("s", "exec") in pd and valu_c and (c.dpp or c.op.startswith("v_permlane")):
        n = max(n, 1)
    if p.cls == "vst" and ("x4" in p.op or "x3" in p.op) and c.dst:
        data = set(regs_of(p.ops[0])) if p.op.startswith("buffer") else set(regs_of(p.ops[1]))
        if data & set(c.dst):
            n = max(n, 2)
    return n


class Asm:
    def __init__(self):
        self.out = []
        self.hist = []
        self.vm = []
        self.lg = []
        self.auto = True
        self.nops = 0
        self.autowaits = 0

    def raw(self, text):
        self.out.append(text)

    def label(self, name):
        self.out.append(name + ":")

    def comment(self, text):
        self.out.append("    ; " + text)

    def _push(self, ins):
        self.out.append("    " + ins.text)
        if ins.nstates:
            self.hist.append(ins)
            if len(self.hist) > 24:
                self.hist.pop(0)

    def wait(self, vm=None, lg=None):
        t = []
        if vm is not None:
            assert 0 <= vm <= 63
            t.append(f"vmcnt({vm})")
            if len(self.vm) > vm:
                self.vm = self.vm[len(self.vm) - vm:] if vm else []
        if lg is not None:
            assert 0 <= lg <= 15
            t.append(f"lgkmcnt({lg})")
            if lg and any(e[1] == "smem" for e in self.lg):
                raise AssertionError("counted lgkmcnt with SMEM outstanding")
            if len(self.lg) > lg:
                self.lg = self.lg[len(self.lg) - lg:] if lg else []
        self._push(Ins("s_waitcnt " + " ".join(t)))

    def vm_count_after(self, tag):
        for k in range(len(self.vm) - 1, -1, -1):
            if self.vm[k][2] == tag:
                return len(self.vm) - 1 - k
        return None

    def wait_tag(self, tag, lg=None):
        n = self.vm_count_after(tag)
        if n is not None:
            self.wait(vm=min(n, 63), lg=lg)
        elif lg is not None:
            self.wait(lg=lg)

    def __call__(self, text, tag=None):
        ins = Ins(text)
        if ins.cls == "meta":
            self.out.append(text)
            return
        assert not ins.op.startswith("s_waitcnt"), "use wait()"
        touched = set(ins.src) | set(ins.srcc) | set(ins.dst)
        nv = nl = None
        for k in range(len(self.vm) - 1, -1, -1):
            if self.vm[k][0] & touched:
                nv = len(self.vm) - 1 - k
                break
        for k in range(len(self.lg) - 1, -1, -1):
            if self.lg[k][0] & touched:
                nl = len(self.lg) - 1 - k
                if any(e[1] == "smem" for e in self.lg):
                    nl = 0
                break
        if nv is not None or nl is not None:
            if not self.auto:
                raise AssertionError("missing s_waitcnt before: " + text)
            self.autowaits += 1
            self.wait(vm=None if nv is None else min(nv, 63), lg=None if nl is None else min(nl, 15))
        dist = 0
        need = 0
        for p in reversed(self.hist):
            need = max(need, need_states(p, ins) - dist)
            dist += p.nstates
            if dist >= 12:
                break
        if need > 0:
            self.nops += need
            self._push(Ins(f"s_nop {need - 1}"))
        self._push(ins)
        if ins.cls in ("vld", "vst", "dma"):
            self.vm.append((set(ins.dst), ins.cls, tag))
        elif ins.cls in ("dsr", "dsw", "smem"):
            self.lg.append((set(ins.dst), ins.cls, tag))

    def fence(self, n=12):
        dist = 0
        need = 0
        for p in reversed(self.hist):
            worst = {"xdl": 12 if p.passes == 8 else 8, "sgemm": 10, "valu": 5 if any(r[0] == "s" for r in p.dst) else 2,
                     "trans": 2, "vst": 2, "salu": 1}.get(p.cls, 0)
            need = max(need, worst - dist)
            dist += p.nstates
            if dist >= 12:
                break
        if need > 0:
            self._push(Ins(f"s_nop {need - 1}"))

    def state(self):
        return (list(self.hist), list(self.vm), list(self.lg))

    def set_state(self, st):
        self.hist, self.vm, self.lg = list(st[0]), list(st[1]), list(st[2])

    def text(self):
        return "\n".join(self.out) + "\n"
```

```python
import struct
from asmlib import v, a, s, R
from layout import *
from g1 import (MFMA, srd, stamp, spin, corr_mfma, V_SD, A_SD16, S_FCS, S_FH, S_F3, S_F4, S_FX)

LOG2E = 1.4426950408889634
GC = 1.5957691216057308


def f32(x):
    return hex(struct.unpack("<I", struct.pack("<f", x))[0])


S_K1 = S_E0 + 6
S_K2 = S_E0 + 8
S_HA, S_HB = S_E0 + 10, S_E0 + 11
MP_STRIDE = 112 * 2048


class Fill:
    def __init__(self, A, spacing):
        self.A, self.q, self.n, self.spacing = A, [], 0, spacing

    def __call__(self, text, tag=None):
        self.A(text, tag=tag)
        self.n += 1
        if self.q and self.n >= self.spacing:
            self.n = 0
            self.pop()

    def pop(self):
        f = self.q.pop(0)
        if callable(f):
            f(self.A)
        else:
            self.A(f)

    def flush(self, pred=None):
        while self.q and (pred is None or any(pred(x) for x in self.q)):
            self.pop()


def sel(h, pos, n):
    lo = [h if k in pos else 0 for k in range(n)]
    hi = [h if k in pos else 1 for k in range(n)]
    return f"op_sel:[{','.join(map(str, lo))}] op_sel_hi:[{','.join(map(str, hi))}]"


def pair_consts(F, pr, ra, rb, rt):
    sd = V_SD + 2 * pr
    F(f"v_rcp_f32 {v(rt)}, {v(sd)}")
    F(f"v_rcp_f32 {v(rt + 1)}, {v(sd + 1)}")
    F(f"v_pk_mul_f32 {v(sd, 2)}, {v(sd, 2)}, {v(sd, 2)}")
    F(f"v_pk_mul_f32 {v(ra, 2)}, {v(rt, 2)}, {s(S_K1, 2)} op_sel_hi:[1,0]")
    F(f"v_pk_mul_f32 {v(rt, 2)}, {v(rt, 2)}, {v(rt, 2)}")
    F(f"v_pk_mul_f32 {v(rb, 2)}, {v(ra, 2)}, {s(S_K2, 2)} op_sel_hi:[1,0]")
    F(f"v_pk_mul_f32 {v(rb, 2)}, {v(rb, 2)}, {v(rt, 2)}")


def geglu_batch(F, items, pr, ra, rb, T, out):
    s2 = V_SD + 2 * pr
    prs = [(g + 2 * k, u + 2 * k, h, T + 4 * n + 2 * k) for n, (g, u, h) in enumerate(items) for k in range(2)]
    for g, u, h, t in prs:
        F(f"v_pk_mul_f32 {v(t, 2)}, {v(g, 2)}, {v(g, 2)}")
    for g, u, h, t in prs:
        F(f"v_pk_fma_f32 {v(t, 2)}, {v(t, 2)}, {v(rb, 2)}, {v(ra, 2)} {sel(h, (1, 2), 3)}")
    for g, u, h, t in prs:
        F(f"v_pk_mul_f32 {v(t, 2)}, {v(t, 2)}, {v(g, 2)}")
    for k in range(8):
        F(f"v_exp_f32 {v(T + k)}, {v(T + k)}")
    for g, u, h, t in prs:
        F(f"v_pk_mul_f32 {v(u, 2)}, {v(g, 2)}, {v(u, 2)}")
    for g, u, h, t in prs:
        F(f"v_pk_fma_f32 {v(t, 2)}, {v(t, 2)}, {v(s2, 2)}, {v(s2, 2)} {sel(h, (1, 2), 3)}")
    for k in range(8):
        F(f"v_rcp_f32 {v(T + k)}, {v(T + k)}")
    for g, u, h, t in prs:
        F(f"v_pk_mul_f32 {v(u, 2)}, {v(u, 2)}, {v(t, 2)}")
    for n, (g, u, h, t) in enumerate(prs):
        F(f"v_cvt_pk_bf16_f32 {v(out + n)}, {v(u)}, {v(u + 1)}")


def acc_to_v(F, dst, areg, n=4):
    for k in range(n):
        F(f"v_accvgpr_read_b32 {v(dst + k)}, {a(areg + k)}")


def cross4(F, op, q, tmp):
    F(f"v_permlane32_swap_b32 {v(q[0])}, {v(q[1])}")
    F(f"v_permlane32_swap_b32 {v(q[2])}, {v(q[3])}")
    F(f"{op} {v(q[0])}, {v(q[0])}, {v(q[1])}")
    F(f"{op} {v(q[2])}, {v(q[2])}, {v(q[3])}")
    F(f"v_permlane16_swap_b32 {v(q[0])}, {v(q[2])}")
    F(f"{op} {v(q[0])}, {v(q[0])}, {v(q[2])}")


def cross4_bcast(F, q):
    F(f"v_mov_b32 {v(q[2])}, {v(q[0])}")
    F(f"v_permlane16_swap_b32 {v(q[0])}, {v(q[2])}")
    F(f"v_mov_b32 {v(q[1])}, {v(q[0])}")
    F(f"v_mov_b32 {v(q[3])}, {v(q[2])}")
    F(f"v_permlane32_swap_b32 {v(q[0])}, {v(q[1])}")
    F(f"v_permlane32_swap_b32 {v(q[2])}, {v(q[3])}")


def softmax_exp(F, P, E, rl, st):
    for m in range(2):
        for sg, q in ((0, st + m), (1, st + 2 + m)):
            x = [("-" if sg else "") + v(P[m] + k) for k in range(8)]
            F(f"v_max3_f32 {v(q)}, {x[0]}, {x[1]}, {x[2]}")
    for lo in (3, 5):
        for m in range(2):
            for sg, q in ((0, st + m), (1, st + 2 + m)):
                x = [("-" if sg else "") + v(P[m] + k) for k in range(8)]
                F(f"v_max3_f32 {v(q)}, {v(q)}, {x[lo]}, {x[lo + 1]}")
    for m in range(2):
        for sg, q in ((0, st + m), (1, st + 2 + m)):
            F(f"v_max_f32_e64 {v(q)}, {v(q)}, {'-' if sg else ''}{v(P[m] + 7)}")
    q = [st, st + 1, st + 2, st + 3]
    cross4(F, "v_max_f32", q, None)
    cross4_bcast(F, q)
    F(f"v_pk_mul_f32 {v(st, 2)}, {v(st, 2)}, {v(rl, 2)} neg_lo:[1,0] neg_hi:[1,0]")
    F(f"v_pk_mul_f32 {v(st + 2, 2)}, {v(st + 2, 2)}, {v(rl, 2)} neg_lo:[1,0] neg_hi:[1,0]")
    for m in range(2):
        for k in range(0, 8, 2):
            F(f"v_pk_fma_f32 {v(E[m] + k, 2)}, {v(P[m] + k, 2)}, {v(rl, 2)}, {v(st, 2)} {sel(m, (1, 2), 3)}")
    for m in range(2):
        for k in range(0, 8, 2):
            F(f"v_pk_fma_f32 {v(P[m] + k, 2)}, {v(P[m] + k, 2)}, {v(rl, 2)}, {v(st + 2, 2)} {sel(m, (1, 2), 3)}"
              f" neg_lo:[1,0,0] neg_hi:[1,0,0]")
    for m in range(2):
        for k in range(8):
            F(f"v_exp_f32 {v(E[m] + k)}, {v(E[m] + k)}")
    for m in range(2):
        for k in range(8):
            F(f"v_exp_f32 {v(P[m] + k)}, {v(P[m] + k)}")


def set_flag(A, name, sreg, one, zero):
    A("s_barrier")
    A(f"s_cmp_lg_u32 {s(S_WV)}, 0")
    A(f"s_cbranch_scc1 L_{name}_skip")
    st = A.state()
    A(f"v_mov_b32 {v(one)}, 1")
    A(f"s_mov_b64 exec, 1")
    A(f"buffer_store_dword {v(one)}, off, {srd(S_WS)}, {s(sreg)} sc1")
    A(f"s_mov_b64 exec, -1")
    A.label(f"L_{name}_skip")
    A.set_state(st)


def poll_words(A, deferred, name, vaddr, vdst, sreg):
    def issue(A):
        A(f"buffer_load_dword {v(vdst)}, {v(vaddr)}, {srd(S_WS)}, {s(sreg)} offen sc1")

    def check(A):
        A(f"v_cmp_eq_u32 vcc, 1, {v(vdst)}")
        A(f"s_cmp_eq_u64 vcc, -1")

    def finish(A):
        check(A)
        A(f"s_cbranch_scc0 L_{name}_spin")
        A.label(f"L_{name}_ok")
    deferred.append(lambda A: spin(A, name, issue, check))
    return issue, finish


def common_consts(A):
    A(f"s_mov_b32 {s(S_K1)}, {f32(-GC * LOG2E)}")
    A(f"s_mov_b32 {s(S_K2)}, {f32(0.044715)}")


def h_bases(A, typ):
    T0, T1 = s(S_T0), s(S_T1)
    A(f"s_lshl1_add_u32 {T0}, {s(S_I)}, {s(S_R)}")
    A(f"s_mul_i32 {T0}, {T0}, {4 * MP_STRIDE}")
    if WS_H:
        A(f"s_add_u32 {T0}, {T0}, {WS_H}")
    ca, cb = (S_COL + 2, S_COL + 4) if typ == 0 else (S_COL + 1, S_COL + 3)
    A(f"s_lshl_b32 {T1}, {s(S_C)}, 11")
    A(f"s_lshl_b32 {s(S_HA)}, {s(ca)}, 5")
    A(f"s_add_u32 {s(S_HA)}, {s(S_HA)}, {T0}")
    A(f"s_add_u32 {s(S_HA)}, {s(S_HA)}, {T1}")
    if typ == 0:
        A(f"s_lshl_b32 {T1}, {s(S_C)}, 10")
    A(f"s_lshl_b32 {s(S_HB)}, {s(cb)}, 5")
    A(f"s_add_u32 {s(S_HB)}, {s(S_HB)}, {T0}")
    A(f"s_add_u32 {s(S_HB)}, {s(S_HB)}, {T1}")


def h_store(F, quad, base, off):
    F(f"buffer_store_dwordx4 {v(quad, 4)}, {v(V_L16)}, {srd(S_WS)}, {s(base)} offen offset:{off} sc1", tag="h")


V_E = 32


def epilogue_b(A, cfg, deferred, prefill):
    typ = 1
    q = lambda j, mb: acc_reg(typ, j, mb)[1]
    common_consts(A)
    h_bases(A, typ)
    for j in (2, 3, 4, 5):
        A(corr_mfma(typ, j, 0))
    F = Fill(A, 6)
    F.q = [corr_mfma(typ, j, 0) for j in (6, 7, 8, 9)] + [corr_mfma(typ, j, 1) for j in range(2, 10)]
    F.q += [corr_mfma(typ, j, qq) for qq in range(2) for j in (0, 1)]
    F.q += prefill
    T = 24
    ra_of = [22, q(5, 0), q(5, 0) + 2, q(5, 1)]
    for mb in range(8):
        pr, h = mb >> 1, mb & 1
        if h == 0:
            pair_consts(F, pr, ra_of[pr], 0, T)
        geglu_batch(F, [(q(2, mb), q(4, mb), h), (q(3, mb), q(5, mb), h)], pr, ra_of[pr], 0, T, q(2, mb))
        h_store(F, q(2, mb), S_HA, 1024 * h)
        ut = q(4, mb)
        acc_to_v(F, ut, q(9, mb))
        geglu_batch(F, [(q(6, mb), q(8, mb), h), (q(7, mb), ut, h)], pr, ra_of[pr], 0, T, q(6, mb))
        h_store(F, q(6, mb), S_HB, 1024 * h)
        if h == 1 and mb < 7:
            F(f"s_add_u32 {s(S_HA)}, {s(S_HA)}, {MP_STRIDE}")
            F(f"s_add_u32 {s(S_HB)}, {s(S_HB)}, {MP_STRIDE}")
    F.flush()
    stamp(A, cfg, 5)
    A(f"s_mov_b32 {s(S_K2)}, {f32(-1.0 / GC)}")
    for pr in range(4):
        A(f"v_pk_mul_f32 {v(V_SD + 2 * pr, 2)}, {v(ra_of[pr], 2)}, {s(S_K2, 2)} op_sel_hi:[1,0]")
    base = 160
    for pr in range(4):
        P = [base + 32 * (pr & 1), base + 32 * (pr & 1) + 8]
        E = [base + 32 * (pr & 1) + 16, base + 32 * (pr & 1) + 24]
        for m in range(2):
            mb = 2 * pr + m
            acc_to_v(A, E[m], q(0, mb))
            acc_to_v(A, E[m] + 4, q(1, mb))
        for m in range(2):
            for k in range(4):
                A(f"v_cvt_pk_bf16_f32 {v(E[m] + k)}, {v(E[m] + 2 * k)}, {v(E[m] + 2 * k + 1)}")
        for m in range(2):
            for fb in range(2):
                A(f"{MFMA} {v(P[m] + 4 * fb, 4)}, {a(A_PHI + 4 * fb, 4)}, {v(E[m], 4)}, 0")
        if pr == cfg.get("b_flag_pr", 2):
            A.wait_tag("h")
            set_flag(A, "fhb", S_FH, 1, None)
            stamp(A, cfg, 6)
        softmax_exp(A, P, E, V_SD + 2 * pr, 24)
        for m in range(2):
            for sg, src in ((0, E[m]), (1, P[m])):
                for k in range(4):
                    A(f"v_cvt_pk_bf16_f32 {v(V_E + 8 * (2 * pr + m) + 4 * sg + k)}, {v(src + 2 * k)}, {v(src + 2 * k + 1)}")
    stamp(A, cfg, 7)


A_KV = A_X + 48
A_PT = A_X + 96


def epilogue_a(A, cfg, deferred, prefill):
    typ = 0
    q = lambda j, mb: acc_reg(typ, j, mb)[1]
    T0, T1 = s(S_T0), s(S_T1)
    common_consts(A)
    h_bases(A, typ)
    for j in (0, 1):
        A(corr_mfma(typ, j, 0))
    F = Fill(A, 6)
    F.q = [corr_mfma(typ, j, 1) for j in (0, 1)] + [corr_mfma(typ, j, qq) for qq in range(2) for j in (2, 3)]
    L = v(V_LANE)
    VW, VR, RS, RL = 12, 1, 24, 22
    F(f"v_and_b32 {v(22)}, 15, {L}")
    F(f"v_lshrrev_b32 {v(23)}, 4, {L}")
    F(f"v_bfe_u32 {v(VW)}, {L}, 2, 2")
    F(f"v_xor_b32 {v(VW)}, {v(VW)}, {v(23)}")
    F(f"v_lshlrev_b32 {v(VW)}, 3, {v(VW)}")
    F(f"v_lshl_add_u32 {v(VW)}, {v(22)}, 5, {v(VW)}")
    F(f"v_and_b32 {v(22)}, 3, {L}")
    F(f"v_xor_b32 {v(22)}, {v(22)}, {v(23)}")
    F(f"v_lshrrev_b32 {v(23)}, 2, {L}")
    F(f"v_lshlrev_b32 {v(23)}, 5, {v(23)}")
    F(f"v_lshl_add_u32 {v(VR)}, {v(22)}, 3, {v(23)}")
    F(f"s_lshl_b32 {T0}, {s(S_WV)}, 12")
    F(f"s_add_u32 {T0}, {T0}, {L_TRS}")
    F(f"v_add_u32 {v(VW)}, {T0}, {v(VW)}")
    F(f"v_add_u32 {v(VR)}, {T0}, {v(VR)}")
    for k in range(8):
        F(f"v_rcp_f32 {v(RS + k)}, {v(V_SD + k)}")
    for mb in range(8):
        for k in range(4):
            src = q(k >> 1, mb) + 2 * (k & 1)
            F(f"v_cvt_pk_bf16_f32 {v(q(0, mb) + k)}, {v(src)}, {v(src + 1)}")
    F.flush()
    F.q = [corr_mfma(typ, j, qq) for qq in range(2) for j in range(4, 10)] + prefill
    for pr in range(4):
        for db in range(2):
            for k in range(4):
                src = q(2 + db, 2 * pr + (k >> 1)) + 2 * (k & 1)
                F(f"v_cvt_pk_bf16_f32 {v(q(2 + db, 2 * pr) + k)}, {v(src)}, {v(src + 1)}")
    P = [q(1, 0), q(1, 2)]
    E = [q(1, 4), q(1, 6)]
    ST, SM = q(2, 1), q(2, 3)
    TP = [q(2, 5), q(2, 7)]
    Z = [q(3, 1), q(3, 3), q(3, 5), q(3, 7)]
    F(f"s_mov_b32 {s(S_T2)}, {f32(LOG2E)}")
    for pr in range(4):
        for m in range(2):
            for fb in range(2):
                F(f"{MFMA} {v(P[m] + 4 * fb, 4)}, {a(A_PHI + 4 * fb, 4)}, {v(q(0, 2 * pr + m), 4)}, 0")
        F(f"v_pk_mul_f32 {v(RL, 2)}, {v(RS + 2 * pr, 2)}, {s(S_T2, 2)} op_sel_hi:[1,0]")
        softmax_exp(F, P, E, RL, ST)
        srcs = [E[0], E[1], P[0], P[1]]
        tps = [TP[0], TP[0] + 2, TP[1], TP[1] + 2]
        for x, t in zip(srcs, tps):
            F(f"v_pk_add_f32 {v(t, 2)}, {v(x, 2)}, {v(x + 2, 2)}")
        for k in (4, 6):
            for x, t in zip(srcs, tps):
                F(f"v_pk_add_f32 {v(t, 2)}, {v(t, 2)}, {v(x + k, 2)}")
        for n, t in enumerate(tps):
            F(f"v_add_f32 {v(SM + n)}, {v(t)}, {v(t + 1)}")
        sq = [SM, SM + 1, SM + 2, SM + 3]
        cross4(F, "v_add_f32", sq, None)
        F(f"v_rcp_f32 {v(SM)}, {v(SM)}")
        cross4_bcast(F, sq)
        F(f"v_pk_mul_f32 {v(SM, 2)}, {v(SM, 2)}, {v(RS + 2 * pr, 2)}")
        F(f"v_pk_mul_f32 {v(SM + 2, 2)}, {v(SM + 2, 2)}, {v(RS + 2 * pr, 2)}")
        for n, x in enumerate(srcs):
            m, sg = n & 1, n >> 1
            for k in range(0, 8, 2):
                F(f"v_pk_mul_f32 {v(x + k, 2)}, {v(x + k, 2)}, {v(SM + 2 * sg, 2)} {sel(m, (1,), 2)}")
        for n, x in enumerate(srcs):
            m, sg = n & 1, n >> 1
            for k in range(4):
                F(f"v_cvt_pk_bf16_f32 {v(x + k)}, {v(x + 2 * k)}, {v(x + 2 * k + 1)}")
            for fb in range(2):
                F(f"ds_write_b64 {v(VW)}, {v(x + 2 * fb, 2)} offset:{2048 * m + 512 * (2 * sg + fb)}")
        for f4 in range(4):
            for m in range(2):
                F(f"ds_read_b64_tr_b16 {a(A_PT + 4 * f4 + 2 * m, 2)}, {v(VR)} offset:{2048 * m + 512 * f4}")
        for f4 in range(4):
            sg, fb = f4 >> 1, f4 & 1
            for db in range(2):
                c = a(A_KV + 16 * sg + 8 * db + 4 * fb, 4)
                F(f"{MFMA} {c}, {a(A_PT + 4 * f4, 4)}, {v(q(2 + db, 2 * pr), 4)}, {c if pr else 0}")
            c = v(Z[f4], 4)
            F(f"{MFMA} {c}, {a(A_PT + 4 * f4, 4)}, {a(A_SD16 + 4 * pr, 4)}, {c if pr else 0}")
    F(f"s_lshl1_add_u32 {T0}, {s(S_P)}, {s(S_C)}")
    F(f"s_mul_i32 {T0}, {T0}, {160}")
    F(f"s_lshl1_add_u32 {T1}, {s(S_I)}, {s(S_R)}")
    F(f"s_add_u32 {T0}, {T0}, {T1}")
    F(f"s_lshl_b32 {T0}, {T0}, 10")
    F(f"s_add_u32 {s(S_T2)}, {T0}, {WS_KVP}")
    F(f"v_and_b32 {v(22)}, 2, {L}")
    F(f"v_cmp_eq_u32 vcc, 0, {v(22)}")
    for k in range(8):
        F(f"buffer_store_dwordx4 {a(A_KV + 4 * k, 4)}, {v(V_L16)}, {srd(S_WS)}, {s(S_T2)} offen sc1", tag="kv")
        F(f"s_add_u32 {s(S_T2)}, {s(S_T2)}, 16384")
    for fb in range(2):
        for k in range(4):
            F(f"v_cndmask_b32 {v(Z[fb] + k)}, {v(Z[2 + fb] + k)}, {v(Z[fb] + k)}, vcc")
        F(f"buffer_store_dwordx4 {v(Z[fb], 4)}, {v(V_L16)}, {srd(S_WS)}, {s(S_T2)} offen sc1", tag="kv")
        F(f"s_add_u32 {s(S_T2)}, {s(S_T2)}, 16384")
    F.flush()
    stamp(A, cfg, 5)
    T, RA, RB, U = 32, 40, 42, 48
    for pr in range(4):
        pair_consts(A, pr, RA, RB, T)
        for h in range(2):
            mb = 2 * pr + h
            u = U + 8 * h
            acc_to_v(A, u, q(6, mb))
            acc_to_v(A, u + 4, q(7, mb))
            geglu_batch(A, [(q(4, mb), u, h), (q(5, mb), u + 4, h)], pr, RA, RB, T, q(4, mb))
            h_store(A, q(4, mb), S_HA, 1024 * h)
        u = U + 16
        acc_to_v(A, u, q(9, 2 * pr), 8)
        geglu_batch(A, [(q(8, 2 * pr), u, 0), (q(8, 2 * pr + 1), u + 4, 1)], pr, RA, RB, T, q(8, 2 * pr))
        h_store(A, q(8, 2 * pr), S_HB, 0)
        if pr < 3:
            A(f"s_add_u32 {s(S_HA)}, {s(S_HA)}, {MP_STRIDE}")
            A(f"s_add_u32 {s(S_HB)}, {s(S_HB)}, {MP_STRIDE}")
        if pr == cfg.get("a_flag_pr", 1):
            A.wait_tag("kv")
            set_flag(A, "fkv", S_F3, 1, None)
    stamp(A, cfg, 6)
    A(f"v_and_b32 {v(4)}, 7, {L}")
    A(f"v_lshlrev_b32 {v(4)}, 2, {v(4)}")
    A(f"s_lshl_b32 {s(S_T2)}, {s(S_P)}, 7")
    A(f"s_add_u32 {s(S_T2)}, {s(S_T2)}, {FL_KV}")
    issue, finish = poll_words(A, deferred, "pkv", 4, 5, S_T2)
    issue(A)
    A.wait(vm=0)
    set_flag(A, "fha", S_FH, 1, None)
    A(f"s_lshl3_add_u32 {s(S_T3)}, {s(S_WV)}, {s(S_I)}")
    A(f"s_cmp_ge_u32 {s(S_T3)}, 20")
    A(f"s_cbranch_scc1 L_nored")
    finish(A)
    A(f"s_mul_i32 {T0}, {s(S_P)}, 20")
    A(f"s_add_u32 {T0}, {T0}, {s(S_T3)}")
    A(f"s_lshl_b32 {T1}, {T0}, 14")
    A(f"s_add_u32 {T1}, {T1}, {WS_KVP}")
    for k in range(16):
        A(f"buffer_load_dwordx4 {v(32 + 4 * k, 4)}, {v(V_L16)}, {srd(S_WS)}, {T1} offen offset:{1024 * (k & 3)} sc1")
        if k & 3 == 3 and k < 15:
            A(f"s_add_u32 {T1}, {T1}, 4096")
    A(f"s_lshl_b32 {T0}, {T0}, 10")
    A(f"s_add_u32 {T0}, {T0}, {WS_KVF}")
    for k in range(1, 16):
        for hh in range(2):
            A(f"v_pk_add_f32 {v(32 + 2 * hh, 2)}, {v(32 + 2 * hh, 2)}, {v(32 + 4 * k + 2 * hh, 2)}")
    A(f"buffer_store_dwordx4 {v(32, 4)}, {v(V_L16)}, {srd(S_WS)}, {T0} offen sc1")
    A.wait(vm=0)
    A.label("L_nored")
    set_flag(A, "fkf", S_F4, 1, None)
    stamp(A, cfg, 7)


def o_step_loads(A, kb):
    T0 = s(S_T0)
    A(f"s_lshl1_add_u32 {T0}, {s(S_P)}, {s(S_C)}")
    A(f"s_mul_i32 {T0}, {T0}, 10240")
    A(f"s_add_u32 {T0}, {T0}, {WS_KVF}")
    for k in range(10):
        A(f"buffer_load_dwordx4 {v(kb + 4 * k, 4)}, {v(V_L16)}, {srd(S_WS)}, {T0} offen offset:{1024 * (k & 3)} sc1")
        if k & 3 == 3:
            A(f"s_add_u32 {T0}, {T0}, 4096")


def o_step(A, kb, tb):
    T0, T1 = s(S_T0), s(S_T1)
    for f in range(5):
        for k in range(4):
            A(f"v_cvt_pk_bf16_f32 {v(kb + 8 * f + k)}, {v(kb + 8 * f + 2 * k)}, {v(kb + 8 * f + 2 * k + 1)}")
    zf, ap, an, tmp = kb + 32, kb + 4, kb + 12, kb + 20
    A(f"v_bfe_u32 {v(tmp)}, {v(V_L16)}, 4, 2")
    A(f"v_mov_b32 {v(tmp + 1)}, 0x3f803f80")
    for dst, zsel, osel in ((ap, 0, 1), (an, 2, 3)):
        A(f"v_cmp_eq_u32 vcc, {osel}, {v(tmp)}")
        A(f"v_cndmask_b32 {v(tmp + 2)}, 0, {v(tmp + 1)}, vcc")
        A(f"v_cmp_eq_u32 vcc, {zsel}, {v(tmp)}")
        for k in range(4):
            A(f"v_cndmask_b32 {v(dst + k)}, {v(tmp + 2)}, {v(zf + k)}, vcc")
    A(f"s_lshl1_add_u32 {T0}, {s(S_I)}, {s(S_R)}")
    A(f"s_lshl_b32 {T0}, {T0}, 7")
    A(f"s_lshl1_add_u32 {T1}, {s(S_P)}, {s(S_C)}")
    A(f"s_add_u32 {T0}, {T0}, {T1}")
    A(f"s_lshl_b32 {T0}, {T0}, 11")
    A(f"s_add_u32 {T0}, {T0}, {WS_O}")
    A(f"s_mov_b32 {T1}, {f32(1e-6)}")

    def mm(mb):
        t = tb + 24 * (mb & 1)
        ep, en = v(V_E + 8 * mb, 4), v(V_E + 8 * mb + 4, 4)
        return [f"{MFMA} {v(t + 16, 4)}, {v(ap, 4)}, {ep}, 0",
                f"{MFMA} {v(t + 16, 4)}, {v(an, 4)}, {en}, {v(t + 16, 4)}",
                f"{MFMA} {v(t, 4)}, {v(kb, 4)}, {ep}, 0",
                f"{MFMA} {v(t + 4, 4)}, {v(kb + 8, 4)}, {ep}, 0",
                f"{MFMA} {v(t + 8, 4)}, {v(kb + 16, 4)}, {en}, 0",
                f"{MFMA} {v(t + 12, 4)}, {v(kb + 24, 4)}, {en}, 0"]
    for x in mm(0):
        A(x)
    F = Fill(A, 2)
    for mb in range(8):
        t = tb + 24 * (mb & 1)
        F.q = mm(mb + 1) if mb < 7 else []
        dp, sp, dn, sn, w = t + 16, t + 17, t + 18, t + 19, t + 20
        F(f"v_mul_f32 {v(w)}, {v(sp)}, {v(sn)}")
        F(f"v_mul_f32 {v(w + 1)}, {v(dp)}, {v(sn)}")
        F(f"v_fma_f32 {v(w + 1)}, {v(dn)}, {v(sp)}, {v(w + 1)}")
        F(f"v_fma_f32 {v(w + 1)}, {v(w)}, {T1}, {v(w + 1)}")
        F(f"v_rcp_f32 {v(w + 1)}, {v(w + 1)}")
        F(f"v_mul_f32 {v(w + 2)}, {v(sn)}, {v(w + 1)}")
        F(f"v_mul_f32 {v(w + 3)}, {v(sp)}, {v(w + 1)}")
        for k in range(0, 8, 2):
            F(f"v_pk_mul_f32 {v(t + k, 2)}, {v(t + k, 2)}, {v(w + 2, 2)} {sel(0, (1,), 2)}")
        for k in range(0, 8, 2):
            F(f"v_pk_fma_f32 {v(t + k, 2)}, {v(t + 8 + k, 2)}, {v(w + 2, 2)}, {v(t + k, 2)} {sel(1, (1,), 3)}")
        F.flush()
        o = V_E + 8 * mb
        for k in range(4):
            A(f"v_cvt_pk_bf16_f32 {v(o + k)}, {v(t + 2 * k)}, {v(t + 2 * k + 1)}")
        A(f"buffer_store_dwordx4 {v(o, 4)}, {v(V_L16)}, {srd(S_WS)}, {T0} offen offset:{1024 * (mb & 1)} sc1", tag="o")
        if mb & 1:
            A(f"s_add_u32 {T0}, {T0}, 65536")
```

```python
from asmlib import v, a, s, R
from layout import *

MFMA = "v_mfma_f32_16x16x32_bf16"
SQ, SG = 6144, 7168
SPIN_MAX = 1 << 17


def srd(b):
    return s(b, 4)


def slot_src(typ, slot):
    kinds = {0: "qqgu", 1: "qgugu"}[typ]
    k = kinds[slot]
    if k == "q":
        return S_QKV, V_DQ, S_KQ, SQ
    return (S_GATE if k == "g" else S_UP), V_DG, S_KG, SG


def dma_w(typ, slot, half, par):
    if typ == 0 and slot == 4:
        pre = [f"s_add_u32 m0, {s(S_MC)}, {par * L_W_PAR + half * 2048}"]
        if half == 0:
            pre.append(f"s_add_u32 {s(S_SO)}, {s(S_KG)}, {s(S_COL + 4)}")
        return pre, f"buffer_load_dwordx4 {v(V_DC)}, {srd(S_UP if half else S_GATE)}, {s(S_SO)} offen lds"
    sr, vo, sk, stride = slot_src(typ, slot)
    pre = [f"s_add_u32 m0, {s(S_MW)}, {half * L_W_SUB + par * L_W_PAR + slot * 4096}"]
    if half == 0:
        pre.append(f"s_add_u32 {s(S_SO)}, {s(sk)}, {s(S_COL + slot)}")
    else:
        pre.append(f"s_add_u32 {s(S_SO)}, {s(S_SO)}, {32 * stride}")
    return pre, f"buffer_load_dwordx4 {v(vo)}, {srd(sr)}, {s(S_SO)} offen lds"


def dma_x(mb, par):
    pre = [f"s_add_u32 m0, {s(S_MX)}, {par * 32768 + mb * 2048}",
           f"s_add_u32 {s(S_SO)}, {s(S_KX)}, {mb * 32768}"]
    return pre, f"buffer_load_dwordx4 {v(V_DX)}, {srd(S_X)}, {s(S_SO)} offen lds"


def emit_dma(A, grp, tag=None):
    for p in grp[0]:
        A(p)
    A(grp[1], tag=tag)


def w_reads(typ, j, par):
    slot, bb = j >> 1, j & 1
    out = []
    for sub in range(2):
        dst = A_W + 8 * (j & 1) + 4 * sub
        if typ == 0 and slot == 4:
            base, off, step = V_CR + sub, par * L_W_PAR + 16384 + bb * 2048, 256
        else:
            base, off, step = V_WR + 2 * sub + bb, par * L_W_PAR + slot * 4096, 512
        out.append(f"ds_read_b64_tr_b16 {a(dst, 2)}, {v(base)} offset:{off}")
        out.append(f"ds_read_b64_tr_b16 {a(dst + 2, 2)}, {v(base)} offset:{off + step}")
    return out


def x_read(mb, sub, par):
    return f"ds_read_b128 {a(A_X + 64 * par + 8 * mb + 4 * sub, 4)}, {v(V_XR + sub)} offset:{par * 32768 + mb * 2048}"


def mfma_main(typ, j, mb, sub, par):
    k, b = acc_reg(typ, j, mb)
    c = R(k, b, 4)
    w = a(A_W + 8 * (j & 1) + 4 * sub, 4)
    x = a(A_X + 64 * par + 8 * mb + 4 * sub, 4)
    if typ == 0 and j in (2, 3):
        return f"{MFMA} {c}, {x}, {w}, {c}"
    return f"{MFMA} {c}, {w}, {x}, {c}"


def stamp(A, cfg, idx):
    if not cfg.get("stamps"):
        return
    A.wait(lg=0)
    A(f"s_memrealtime {s(S_STAMP, 2)}")
    A.wait(lg=0)
    stamp_store(A, idx)


def stamp_store(A, idx):
    A(f"v_accvgpr_write_b32 a255, {s(S_STAMP)}")
    A(f"buffer_store_dword a255, off, {srd(S_WS)}, {s(S_STAMP + 2)} offset:{4 * idx}")


def prologue(A, cfg):
    A(f"s_cmp_ge_u32 s2, 256")
    A(f"s_cbranch_scc1 L_exit")
    for reg, off in ((S_X, 0), (S_QKV, 8), (S_GATE, 40), (S_UP, 48), (S_WS, 80), (S_PHI, 16), (S_DBG, 72),
                     (S_DOWN, 56), (S_WO, 24), (S_OUT, 64)):
        A(f"s_load_dwordx2 {s(reg, 2)}, s[0:1], {off}")
    if cfg.get("stamps"):
        A(f"s_memrealtime {s(S_STAMP, 2)}")
    A(f"v_lshrrev_b32 v1, 6, v0")
    A(f"v_and_b32 {v(V_LANE)}, 63, v0")
    A(f"v_readfirstlane_b32 {s(S_WV)}, v1")
    for reg, nb in ((S_X, 4194304), (S_QKV, 6291456), (S_GATE, 7340032), (S_UP, 7340032), (S_WS, WS_BYTES),
                    (S_PHI, 65536), (S_DBG, 256), (S_DOWN, 7340032), (S_WO, 2097152), (S_OUT, 4194304)):
        A(f"s_mov_b32 {s(reg + 2)}, {nb}")
        A(f"s_mov_b32 {s(reg + 3)}, 0x00020000")
    T0, T1, T2 = s(S_T0), s(S_T1), s(S_T2)
    A(f"s_lshr_b32 {s(S_R)}, {s(S_WV)}, 1")
    A(f"s_and_b32 {s(S_C)}, {s(S_WV)}, 1")
    A(f"s_lshr_b32 {s(S_I)}, s2, 5")
    A(f"s_bfe_u32 {s(S_TYP)}, s2, 0x10003")
    A(f"s_bfe_u32 {T0}, s2, 0x10004")
    A(f"s_and_b32 {T1}, s2, 7")
    A(f"s_lshl1_add_u32 {s(S_P)}, {T1}, {T0}")
    A(f"s_lshl1_add_u32 {s(S_J)}, {s(S_P)}, {s(S_TYP)}")
    A(f"s_lshr_b32 {s(S_KH)}, {s(S_P)}, 3")
    A(f"s_and_b32 {s(S_PL)}, {s(S_P)}, 7")
    A(f"s_min_u32 {s(S_TCS)}, {s(S_I)}, 5")
    A(f"s_max_u32 {s(S_CA)}, {s(S_I)}, 5")
    A(f"s_lshl_b32 {s(S_MW)}, {s(S_WV)}, 10")
    A(f"s_lshl_b32 {T0}, {s(S_R)}, 14")
    A(f"s_lshl_b32 {T1}, {s(S_C)}, 10")
    A(f"s_add_u32 {s(S_MX)}, {T0}, {T1}")
    A(f"s_add_u32 {s(S_MX)}, {s(S_MX)}, {L_X}")
    A(f"s_mul_i32 {T0}, {s(S_R)}, {L_W_SUB}")
    A(f"s_add_u32 {T0}, {T0}, {T1}")
    A(f"s_add_u32 {s(S_MC)}, {T0}, 16384")
    L = v(V_LANE)
    t = [v(V_T + k) for k in range(8)]
    A(f"v_lshlrev_b32 {v(V_L16)}, 4, {L}")
    A(f"v_lshrrev_b32 {t[0]}, 3, {L}")
    A(f"v_lshrrev_b32 {t[1]}, 4, {L}")
    A(f"v_and_b32 {t[2]}, 7, {L}")
    A(f"s_lshl_b32 {T0}, {s(S_C)}, 2")
    A(f"v_add_u32 {t[3]}, {T0}, {t[1]}")
    A(f"v_xor_b32 {t[3]}, {t[3]}, {t[2]}")
    A(f"s_lshl_b32 {T0}, {s(S_I)}, 8")
    A(f"s_lshl_b32 {T1}, {s(S_R)}, 7")
    A(f"s_add_u32 {T0}, {T0}, {T1}")
    A(f"s_lshl3_add_u32 {T0}, {s(S_C)}, {T0}")
    A(f"v_add_u32 {t[4]}, {T0}, {t[0]}")
    A(f"v_lshlrev_b32 {t[4]}, 11, {t[4]}")
    A(f"v_lshl_add_u32 {v(V_DX)}, {t[3]}, 4, {t[4]}")
    A(f"v_and_b32 {t[3]}, 1, {t[1]}")
    A(f"s_lshl_b32 {T0}, {s(S_C)}, 1")
    A(f"v_or_b32 {t[3]}, {T0}, {t[3]}")
    A(f"v_lshlrev_b32 {t[3]}, 1, {t[3]}")
    A(f"v_xor_b32 {t[3]}, {t[3]}, {t[2]}")
    A(f"v_lshlrev_b32 {t[3]}, 4, {t[3]}")
    A(f"s_lshl_b32 {T0}, {s(S_WV)}, 3")
    A(f"v_add_u32 {t[4]}, {T0}, {t[0]}")
    A(f"v_mul_u32_u24 {t[5]}, {SQ}, {t[4]}")
    A(f"v_add_u32 {v(V_DQ)}, {t[5]}, {t[3]}")
    A(f"v_mul_u32_u24 {t[5]}, {SG}, {t[4]}")
    A(f"v_add_u32 {v(V_DG)}, {t[5]}, {t[3]}")
    A(f"v_lshrrev_b32 {t[3]}, 5, {L}")
    A(f"v_lshlrev_b32 {t[3]}, 1, {t[3]}")
    A(f"v_and_b32 {t[4]}, 3, {L}")
    A(f"v_xor_b32 {t[3]}, {t[3]}, {t[4]}")
    A(f"v_lshrrev_b32 {t[5]}, 2, {L}")
    A(f"s_lshl_b32 {T0}, {s(S_WV)}, 4")
    A(f"v_add_u32 {t[5]}, {T0}, {t[5]}")
    A(f"v_mul_u32_u24 {t[5]}, {SG}, {t[5]}")
    A(f"v_lshl_add_u32 {v(V_DC)}, {t[3]}, 4, {t[5]}")
    A(f"s_lshl_b32 {T0}, s2, 3")
    A(f"s_lshl1_add_u32 {T0}, {s(S_WV)}, {T0}")
    A(f"v_lshrrev_b32 {t[6]}, 5, {L}")
    A(f"v_add_u32 {t[6]}, {T0}, {t[6]}")
    A(f"v_and_b32 {t[3]}, 31, {L}")
    A(f"v_lshlrev_b32 {t[3]}, 4, {t[3]}")
    A(f"v_lshl_add_u32 {t[7]}, {t[6]}, 11, {t[3]}")
    A(f"s_mul_i32 {T2}, {s(S_KH)}, {28 * 128}")
    A(f"s_mov_b32 {s(S_KX)}, 0")
    A(f"s_mov_b32 {s(S_KQ)}, 0")
    A(f"s_mov_b32 {s(S_KG)}, 0")
    A.wait(lg=0)
    if cfg.get("stamps"):
        A(f"s_lshl2_add_u32 {s(S_STAMP + 2)}, s2, {s(S_WV)}")
        A(f"s_lshl_b32 {s(S_STAMP + 2)}, {s(S_STAMP + 2)}, 7")
        A(f"s_add_u32 {s(S_STAMP + 2)}, {s(S_STAMP + 2)}, {WS_STAMP}")
        stamp_store(A, 0)
    for q in range(4):
        A(f"buffer_load_dwordx4 {v(32 + 4 * q, 4)}, {t[7]}, {srd(S_X)}, 0 offen offset:{512 * q}")
    for mb in range(8):
        emit_dma(A, dma_x(mb, 0), tag="x0")
    A(f"s_cmp_eq_u32 {s(S_TYP)}, 1")
    A(f"s_cbranch_scc1 L_typeB")


def read_addrs(A):
    L = v(V_LANE)
    T0, T1 = s(S_T0), s(S_T1)
    t = [v(V_T + 8 + k) for k in range(5)]
    g = v(V_T + 1)
    A(f"s_lshl_b32 {T0}, {s(S_R)}, 2")
    A(f"v_add_u32 {t[0]}, {T0}, {g}")
    A(f"v_bfe_u32 {t[1]}, {L}, 1, 3")
    A(f"v_xor_b32 {t[0]}, {t[0]}, {t[1]}")
    A(f"v_and_b32 {t[1]}, 15, {L}")
    A(f"v_lshlrev_b32 {t[1]}, 7, {t[1]}")
    A(f"v_lshl_add_u32 {t[0]}, {t[0]}, 4, {t[1]}")
    A(f"s_lshl_b32 {T0}, {s(S_R)}, 14")
    A(f"s_add_u32 {T0}, {T0}, {L_X}")
    A(f"v_add_u32 {v(V_XR)}, {T0}, {t[0]}")
    A(f"v_xor_b32 {v(V_XR + 1)}, 64, {v(V_XR)}")
    A(f"v_bfe_u32 {t[0]}, {L}, 2, 2")
    A(f"v_lshl_add_u32 {t[0]}, {g}, 3, {t[0]}")
    A(f"v_and_b32 {t[1]}, 3, {L}")
    A(f"v_lshlrev_b32 {t[1]}, 3, {t[1]}")
    A(f"v_bfe_u32 {t[2]}, {L}, 3, 2")
    A(f"s_lshl_b32 {T0}, {s(S_C)}, 1")
    A(f"v_xor_b32 {t[2]}, {T0}, {t[2]}")
    A(f"v_lshl_add_u32 {t[2]}, {t[2]}, 5, {t[1]}")
    A(f"v_lshl_add_u32 {t[2]}, {t[0]}, 7, {t[2]}")
    A(f"s_mul_i32 {T0}, {s(S_R)}, {L_W_SUB}")
    A(f"s_sub_u32 {T1}, {L_W_SUB}, {T0}")
    A(f"v_add_u32 {v(V_WR)}, {T0}, {t[2]}")
    A(f"v_add_u32 {v(V_WR + 2)}, {T1}, {t[2]}")
    A(f"v_xor_b32 {v(V_WR + 1)}, 32, {v(V_WR)}")
    A(f"v_xor_b32 {v(V_WR + 3)}, 32, {v(V_WR + 2)}")
    A(f"v_and_b32 {t[3]}, 1, {g}")
    A(f"v_xor_b32 {t[3]}, {s(S_C)}, {t[3]}")
    A(f"v_lshl_add_u32 {t[3]}, {t[3]}, 5, {t[1]}")
    A(f"v_lshl_add_u32 {t[3]}, {t[0]}, 6, {t[3]}")
    A(f"v_add_u32 {v(V_CR)}, {T0}, {t[3]}")
    A(f"v_add_u32 {v(V_CR + 1)}, {T1}, {t[3]}")


def reduce32(A, x, tmp):
    for sh in (8, 4, 2, 1):
        A(f"v_add_f32_dpp {x}, {x}, {x} row_ror:{sh} row_mask:0xf bank_mask:0xf")
    A(f"v_mov_b32 {tmp}, {x}")
    A(f"v_permlane16_swap_b32 {tmp}, {x}")
    A(f"v_add_f32 {x}, {x}, {tmp}")


def round_bf16(A, x):
    A(f"v_cvt_pk_bf16_f32 {x}, {x}, {x}")
    A(f"v_lshlrev_b32 {x}, 16, {x}")


S_FCS, S_FH, S_F3, S_F4, S_FX = S_E0, S_E0 + 1, S_E0 + 2, S_E0 + 3, S_E0 + 4


def stats_and_flags(A, typ):
    T0, T1 = s(S_T0), s(S_T1)
    row = v(V_T + 6)
    for k in range(16):
        A(f"v_lshlrev_b32 {v(48 + 2 * k)}, 16, {v(32 + k)}")
        A(f"v_and_b32 {v(49 + 2 * k)}, 0xffff0000, {v(32 + k)}")
    for k in range(8):
        A(f"v_pk_add_f32 {v(80 + 2 * k, 2)}, {v(48 + 4 * k, 2)}, {v(50 + 4 * k, 2)}")
    for n in (4, 2, 1):
        for k in range(n):
            A(f"v_pk_add_f32 {v(80 + 2 * k, 2)}, {v(80 + 2 * k, 2)}, {v(80 + 2 * (k + n), 2)}")
    A(f"v_add_f32 v96, v80, v81")
    reduce32(A, "v96", "v97")
    A(f"v_mul_f32 v96, {hex(0xba800000)}, v96")
    for k in range(16):
        A(f"v_pk_add_f32 {v(48 + 2 * k, 2)}, {v(48 + 2 * k, 2)}, v[96:97] op_sel_hi:[1,0]")
    for k in range(4):
        A(f"v_pk_mul_f32 {v(80 + 2 * k, 2)}, {v(48 + 2 * k, 2)}, {v(48 + 2 * k, 2)}")
    for k in range(4, 16):
        d = v(80 + 2 * (k & 3), 2)
        A(f"v_pk_fma_f32 {d}, {v(48 + 2 * k, 2)}, {v(48 + 2 * k, 2)}, {d}")
    A(f"v_pk_add_f32 v[80:81], v[80:81], v[84:85]")
    A(f"v_pk_add_f32 v[82:83], v[82:83], v[86:87]")
    A(f"v_pk_add_f32 v[80:81], v[80:81], v[82:83]")
    A(f"v_add_f32 v98, v80, v81")
    reduce32(A, "v98", "v97")
    A(f"v_mul_f32 v98, {hex(0x3a800000)}, v98")
    round_bf16(A, "v98")
    A(f"v_add_f32 v98, {hex(0x3727c5ac)}, v98")
    round_bf16(A, "v98")
    A(f"v_sqrt_f32 v98, v98")
    round_bf16(A, "v96")
    A(f"v_cvt_pk_bf16_f32 v99, v98, v98")
    A(f"v_lshlrev_b32 v98, 16, v99")
    A(f"v_lshlrev_b32 v100, 2, {row}")
    A(f"v_lshrrev_b32 v101, 7, {row}")
    A(f"v_lshlrev_b32 v101, 9, v101")
    A(f"v_and_b32 v102, 15, {row}")
    A(f"v_lshl_add_u32 v101, v102, 5, v101")
    A(f"v_bfe_u32 v102, {row}, 4, 3")
    A(f"v_lshl_add_u32 v101, v102, 2, v101")
    A(f"v_lshrrev_b32 v103, 5, {row}")
    A(f"v_lshlrev_b32 v103, 6, v103")
    A(f"v_bfe_u32 v102, {row}, 2, 2")
    A(f"v_lshl_add_u32 v103, v102, 4, v103")
    A(f"v_bfe_u32 v102, {row}, 4, 1")
    A(f"v_lshl_add_u32 v103, v102, 3, v103")
    A(f"v_and_b32 v102, 3, {row}")
    A(f"v_lshl_add_u32 v103, v102, 1, v103")
    A(f"v_mov_b32 v104, 0")
    A(f"s_mov_b32 exec_lo, 1")
    A(f"s_mov_b32 exec_hi, 1")
    A(f"s_mov_b32 {T0}, {WS_NEGM}")
    A(f"buffer_store_dword v96, v100, {srd(S_WS)}, {T0} offen sc1")
    A(f"s_mov_b32 {T0}, {WS_SDT}")
    A(f"buffer_store_dword v98, v101, {srd(S_WS)}, {T0} offen sc1")
    A(f"s_mov_b32 {T0}, {WS_SD16}")
    A(f"buffer_store_short v99, v103, {srd(S_WS)}, {T0} offen sc1")
    A(f"s_lshl_b32 {T0}, {s(S_J)}, 7")
    A(f"s_lshl2_add_u32 {T0}, {s(S_I)}, {T0}")
    A(f"s_add_u32 {s(S_FCS)}, {T0}, {FL_CS}")
    A(f"s_lshl1_add_u32 {T0}, {s(S_I)}, {s(S_KH)}")
    A(f"s_lshl_b32 {T0}, {T0}, 7")
    A(f"s_lshl2_add_u32 {T0}, {s(S_PL)}, {T0}")
    A(f"s_add_u32 {s(S_FH)}, {T0}, {FL_H + (32 if typ == 0 else 0)}")
    if typ == 0:
        A(f"s_lshl_b32 {T0}, {s(S_P)}, 7")
        A(f"s_lshl2_add_u32 {T0}, {s(S_I)}, {T0}")
        A(f"s_add_u32 {s(S_F3)}, {T0}, {FL_KV}")
        A(f"s_add_u32 {s(S_F4)}, {T0}, {FL_KF}")
    else:
        A(f"s_lshl_b32 {T0}, {s(S_I)}, 7")
        A(f"s_lshl2_add_u32 {T0}, {s(S_P)}, {T0}")
        A(f"s_add_u32 {s(S_F3)}, {T0}, {FL_O}")
    A(f"s_lshl_b32 {T0}, s2, 7")
    A(f"s_add_u32 {s(S_FX)}, {T0}, {FL_X}")
    A(f"s_mov_b64 exec, 1")
    A(f"s_cmp_lg_u32 {s(S_WV)}, 0")
    A(f"s_cbranch_scc1 L_noclr{typ}")
    st = A.state()
    for f in ([S_FCS, S_FH, S_F3, S_FX] + ([S_F4] if typ == 0 else [])):
        A(f"buffer_store_dword v104, v104, {srd(S_WS)}, {s(f)} offen sc1")
    A.label(f"L_noclr{typ}")
    A.set_state(st)
    A(f"s_mov_b64 exec, -1")


def col_offsets(A, typ):
    T0, T1, T2 = s(S_T0), s(S_T1), s(S_T2)
    A(f"s_lshl_b32 {T0}, {s(S_P)}, 7")
    if typ == 0:
        A(f"s_add_u32 {s(S_COL)}, {T0}, 2048")
        A(f"s_add_u32 {s(S_COL + 1)}, {T0}, 4096")
        A(f"s_lshl_b32 {T1}, {s(S_PL)}, 7")
        A(f"s_add_u32 {T1}, {T1}, {T2}")
        A(f"s_add_u32 {s(S_COL + 2)}, {T1}, {16 * 128}")
        A(f"s_mov_b32 {s(S_COL + 3)}, {s(S_COL + 2)}")
        A(f"s_lshl_b32 {T1}, {s(S_PL)}, 6")
        A(f"s_add_u32 {T1}, {T1}, {T2}")
        A(f"s_add_u32 {s(S_COL + 4)}, {T1}, {24 * 128}")
    else:
        A(f"s_mov_b32 {s(S_COL)}, {T0}")
        A(f"s_lshl_b32 {T1}, {s(S_PL)}, 8")
        A(f"s_add_u32 {s(S_COL + 1)}, {T1}, {T2}")
        A(f"s_mov_b32 {s(S_COL + 2)}, {s(S_COL + 1)}")
        A(f"s_add_u32 {s(S_COL + 3)}, {s(S_COL + 1)}, 128")
        A(f"s_mov_b32 {s(S_COL + 4)}, {s(S_COL + 3)}")


def prologue_type(A, typ, cfg):
    T0 = s(S_T0)
    col_offsets(A, typ)
    for slot in range(3):
        for h in range(2):
            emit_dma(A, dma_w(typ, slot, h, 0), tag="e0" if slot else "w00")
    A(f"s_mov_b32 {s(S_KX)}, 128")
    for mb in range(3):
        emit_dma(A, dma_x(mb, 1), tag="e0")
    for slot in (3, 4):
        for h in range(2):
            emit_dma(A, dma_w(typ, slot, h, 0))
    for mb in range(3, 8):
        emit_dma(A, dma_x(mb, 1))
    A(f"s_mov_b32 {s(S_KQ)}, {64 * SQ}")
    A(f"s_mov_b32 {s(S_KG)}, {64 * SG}")
    for slot in range(3):
        for h in range(2):
            emit_dma(A, dma_w(typ, slot, h, 1))
    A(f"s_add_u32 m0, {s(S_MW)}, {L_PHI}")
    A(f"s_lshl2_add_u32 {T0}, {s(S_P)}, {s(S_WV)}")
    A(f"s_lshl_b32 {T0}, {T0}, 10")
    A(f"buffer_load_dwordx4 {v(V_L16)}, {srd(S_PHI)}, {T0} offen lds")
    read_addrs(A)
    for k in range(96):
        A(f"v_accvgpr_write_b32 {a(A_ACC + k)}, 0")
    for k in range(4):
        A(f"v_accvgpr_write_b32 {a(A_CS + k)}, 0")
    for k in range(106, 256, 2):
        A(f"v_mov_b64 {v(k, 2)}, 0")
    stats_and_flags(A, typ)
    for k in range(32, 106, 2):
        A(f"v_mov_b64 {v(k, 2)}, 0")
    A(f"s_mov_b32 {s(S_IT)}, 0")
    A(f"s_mov_b32 {s(S_TAU)}, 2")
    A(f"s_mov_b32 {s(S_TP)}, 2")
    A(f"s_mov_b32 {s(S_KX)}, 256")
    stamp(A, cfg, 1)
    A.wait_tag("w00")
    A("s_barrier")
    for sub in range(2):
        for mb in range(8):
            A(x_read(mb, sub, 0))
    for r in w_reads(typ, 0, 0):
        A(r)
    A.wait_tag("e0", lg=0)
    A("s_barrier")
    for mb in range(3):
        emit_dma(A, dma_x(mb, 0))
    for h in range(2):
        emit_dma(A, dma_w(typ, 3, h, 1))
    stamp(A, cfg, 2)


def step_plan(typ, par, mode, cfg):
    gaps = [[] for _ in range(160)]
    npar = 1 - par

    def put_dma(j, k, grp):
        g = 16 * j + (8, 11, 14)[k]
        gaps[g - 1] += grp[0]
        gaps[g].append(grp[1])

    for j in range(10):
        if j < 9:
            rd = w_reads(typ, j + 1, par)
        else:
            rd = w_reads(typ, 0, npar) if mode != "last" else []
        for k, r in enumerate(rd):
            gaps[16 * j + k].append(r)
    if mode != "last":
        xr = [(mb, sub) for mb in range(8) for sub in range(2)]
        per_j = {0: 2, 1: 2, 2: 1, 3: 1, 5: 3, 6: 3, 7: 2, 8: 2}
        for j, n in per_j.items():
            for k in range(n):
                mb, sub = xr.pop(0)
                gaps[16 * j + 4 + k].append(x_read(mb, sub, npar))
    if mode in ("main", "cs"):
        o_rest = [dma_w(typ, 4, 0, npar), dma_w(typ, 4, 1, npar)] + [dma_x(mb, par) for mb in range(3, 8)]
        for (j, k), grp in zip(((0, 0), (0, 2), (1, 1), (2, 0), (2, 2), (3, 1), (4, 0)), o_rest):
            put_dma(j, k, grp)
        e_all = [dma_w(typ, sl, h, par) for sl in range(3) for h in range(2)] + [dma_x(mb, npar) for mb in range(3)]
        for (j, k), grp in zip(((5, 0), (5, 1), (5, 2), (6, 0), (6, 2), (7, 0), (7, 2), (8, 0), (8, 2)), e_all):
            put_dma(j, k, grp)
        put_dma(9, 0, dma_w(typ, 3, 0, par))
        put_dma(9, 2, dma_w(typ, 3, 1, par))
        T0, T1 = s(S_T0), s(S_T1)
        gaps[16 * 1 + 6] += [f"s_mul_i32 {s(S_KQ)}, {s(S_TP)}, {64 * SQ}"]
        gaps[16 * 1 + 7] += [f"s_mul_i32 {s(S_KG)}, {s(S_TP)}, {64 * SG}"]
        gaps[16 * 3 + 5] += [f"s_add_u32 {s(S_TAU)}, {s(S_TAU)}, 1", f"s_lshr_b32 {T0}, {s(S_TAU)}, 1"]
        gaps[16 * 3 + 6] += [f"s_cmp_eq_u32 {T0}, 5", f"s_cselect_b32 {T1}, {s(S_CA)}, {T0}"]
        gaps[16 * 3 + 7] += [f"s_cmp_eq_u32 {T0}, {s(S_CA)}", f"s_cselect_b32 {T1}, 5, {T1}"]
        gaps[16 * 3 + 8] += [f"s_and_b32 {T0}, {s(S_TAU)}, 1", f"s_lshl1_add_u32 {s(S_TP)}, {T1}, {T0}"]
        gaps[16 * 4 + 12] += [f"s_lshl_b32 {s(S_KX)}, {s(S_TP)}, 7"]
    if mode == "pen":
        put_dma(0, 0, dma_w(typ, 4, 0, npar))
        put_dma(0, 2, dma_w(typ, 4, 1, npar))
    if mode == "cs":
        for j in range(10):
            g = 16 * j
            gaps[g + 9] += [f"v_cmp_eq_u32 vcc, {j}, {v(V_T)}"]
            gaps[g + 12] += [f"v_cndmask_b32 {v(V_SEL + k)}, 0, {v(V_T + 1)}, vcc" for k in range(2)]
            gaps[g + 13] += [f"v_cndmask_b32 {v(V_SEL + k)}, 0, {v(V_T + 1)}, vcc" for k in range(2, 4)]
            gaps[g + 15] += [f"{MFMA} {a(A_CS, 4)}, {v(V_SEL, 4)}, {a(A_W + 8 * (j & 1), 4)}, {a(A_CS, 4)}"]
    return gaps


def emit_step(A, typ, par, mode, cfg, extra=None, vm=(18, 18)):
    gaps = step_plan(typ, par, mode, cfg)
    if extra:
        for g, items in extra.items():
            gaps[g] += items
    for j in range(10):
        if j == 5 or (j == 9 and mode != "last"):
            A.wait(vm=vm[0 if j == 5 else 1], lg=0)
            A("s_barrier")
        else:
            nx = 0
            for e in reversed(A.lg):
                if len(e[0]) == 2:
                    break
                nx += 1
            if j == 0:
                nx = 0
            A.wait(lg=nx)
        for mb in range(8):
            for ss in range(2):
                sub = ss ^ (mb & 1) if cfg.get("snake") else ss
                A(mfma_main(typ, j, mb, sub, par))
                for f in gaps[16 * j + 2 * mb + ss]:
                    if callable(f):
                        f(A)
                    else:
                        A(f)


def spin(A, name, issue, check):
    A.label(f"L_{name}_spin")
    A(f"s_mov_b32 {s(S_SPIN)}, 0")
    A.label(f"L_{name}_loop")
    A("s_sleep 1")
    issue(A)
    A.wait(vm=0)
    check(A)
    A(f"s_cbranch_scc1 L_{name}_ok")
    A(f"s_add_u32 {s(S_SPIN)}, {s(S_SPIN)}, 1")
    A(f"s_cmp_lt_u32 {s(S_SPIN)}, {SPIN_MAX}")
    A(f"s_cbranch_scc1 L_{name}_loop")
    A(f"s_branch L_{name}_ok")


V_SD = V_T
V_CSS = V_T + 8
V_P0, V_P1 = V_SEL, V_SEL + 1
A_CSP = A_X
A_SD16 = A_X + 32


def main_loop(A, typ, cfg, deferred):
    T0, T1 = s(S_T0), s(S_T1)
    A(f"v_and_b32 {v(V_T)}, 15, {v(V_LANE)}")
    A(f"v_mov_b32 {v(V_T + 1)}, 0x3f803f80")
    A(f"v_mov_b32 {v(V_T + 2)}, 1")
    A(f"v_mov_b32 {v(V_T + 3)}, 0")
    A(f"s_cmp_eq_u32 {s(S_TCS)}, 0")
    A(f"s_cbranch_scc1 L_cs{typ}")
    entry = A.state()
    A.raw("    .p2align 3")
    A.label(f"L_main{typ}")
    A.auto = False
    emit_step(A, typ, 0, "main", cfg)
    emit_step(A, typ, 1, "main", cfg)
    A.label(f"L_next{typ}")
    A(f"s_add_u32 {s(S_IT)}, {s(S_IT)}, 1")
    A(f"s_cmp_lg_u32 {s(S_WV)}, 0")
    A(f"s_cbranch_scc0 L_ev{typ}")
    A.label(f"L_evdone{typ}")
    A(f"s_cmp_eq_u32 {s(S_IT)}, 7")
    A(f"s_cbranch_scc1 L_tail{typ}")
    A(f"s_cmp_lg_u32 {s(S_IT)}, {s(S_TCS)}")
    A(f"s_cbranch_scc1 L_main{typ}")
    steady = A.state()
    A.raw("    .p2align 3")
    A.label(f"L_cs{typ}")
    emit_step(A, typ, 0, "cs", cfg)
    emit_step(A, typ, 1, "cs", cfg)
    A(f"s_lshl1_add_u32 {T0}, {s(S_J)}, {s(S_C)}")
    A(f"s_lshl1_add_u32 {T0}, {T0}, {s(S_R)}")
    A(f"s_lshl3_add_u32 {T0}, {T0}, {s(S_I)}")
    A(f"s_lshl_b32 {T0}, {T0}, 10")
    A(f"s_add_u32 {T0}, {T0}, {WS_CSP}")
    A(f"buffer_store_dwordx4 {a(A_CS, 4)}, {v(V_L16)}, {srd(S_WS)}, {T0} offen sc1")
    A(f"s_branch L_next{typ}")

    def events(A):
        A.label(f"L_ev{typ}")
        A(f"s_mov_b64 exec, 1")
        A(f"s_cmp_lg_u32 {s(S_IT)}, 1")
        A(f"s_cbranch_scc1 L_ev{typ}_b")
        A(f"buffer_atomic_add {v(V_T + 2)}, {v(V_T + 3)}, {srd(S_DBG)}, 0 offen sc1")
        A.label(f"L_ev{typ}_b")
        A(f"s_add_u32 {T0}, {s(S_TCS)}, 2")
        A(f"s_cmp_lg_u32 {s(S_IT)}, {T0}")
        A(f"s_cbranch_scc1 L_ev{typ}_c")
        A(f"buffer_store_dword {v(V_T + 2)}, {v(V_T + 3)}, {srd(S_WS)}, {s(S_FCS)} offen sc1")
        A.label(f"L_ev{typ}_c")
        A(f"s_mov_b64 exec, -1")
        A(f"s_branch L_evdone{typ}")
    deferred.append(events)

    A.set_state(steady)
    A.raw("    .p2align 3")
    A.label(f"L_tail{typ}")
    A.auto = True
    vq = v(V_T + 4)

    def poll_check(A):
        A(f"v_cmp_eq_u32 vcc, 1, {v(V_P0)}")
        A(f"v_cmp_eq_u32 {s(S_T0, 2)}, {v(V_P1)}, {s(S_T3)}")
        A(f"s_and_b64 vcc, vcc, {s(S_T0, 2)}")
        A(f"s_cmp_eq_u64 vcc, -1")

    def poll_start(A):
        A(f"buffer_load_dword {v(V_P1)}, {v(V_T + 3)}, {srd(S_DBG)}, 0 offen sc1")

    def poll_mid(A):
        A(f"v_mov_b32 {v(V_P1 + 1)}, {v(V_P1)}")
        A(f"buffer_load_dword {v(V_P0)}, {vq}, {srd(S_WS)}, {s(S_T2)} offen sc1")

    def poll_end(A):
        poll_check(A)
        A(f"s_cbranch_scc0 L_pc{typ}_spin")
        A.label(f"L_pc{typ}_ok")

    def spin_issue(A):
        A(f"buffer_load_dword {v(V_P1)}, {v(V_T + 3)}, {srd(S_DBG)}, 0 offen sc1")
        A.wait(vm=0)
        A(f"buffer_load_dword {v(V_P0)}, {vq}, {srd(S_WS)}, {s(S_T2)} offen sc1")
    deferred.append(lambda A: spin(A, f"pc{typ}", spin_issue, poll_check))

    ex14 = {
        16 * 1 + 10: [f"v_and_b32 {vq}, 7, {v(V_LANE)}"],
        16 * 1 + 11: [f"v_lshlrev_b32 {vq}, 2, {vq}"],
        16 * 1 + 7: [f"s_lshl_b32 {s(S_T2)}, {s(S_J)}, 7", f"s_add_u32 {s(S_T2)}, {s(S_T2)}, {FL_CS}"],
        16 * 1 + 8: [f"s_movk_i32 {s(S_T3)}, 256"],
        16 * 0 + 6: [poll_start],
        16 * 5 + 9: [poll_mid],
        16 * 9 + 9: [poll_end],
    }
    emit_step(A, typ, 0, "pen", cfg, extra=ex14, vm=(14, 6))

    va, vb, vc = v(V_DX), v(V_DQ), v(V_DG)
    ex15 = {g: [] for g in range(160)}
    seq = [
        f"s_lshl1_add_u32 {T0}, {s(S_J)}, {s(S_C)}",
        f"s_lshl1_add_u32 {T0}, {T0}, {s(S_R)}",
        f"s_lshl_b32 {T0}, {T0}, 13",
        f"s_add_u32 {T0}, {T0}, {WS_CSP}",
    ]
    for k in range(4):
        seq.append(f"buffer_load_dwordx4 {a(A_CSP + 4 * k, 4)}, {v(V_L16)}, {srd(S_WS)}, {T0} offen offset:{1024 * k} sc1")
    seq.append(f"s_add_u32 {T0}, {T0}, 4096")
    for k in range(4):
        seq.append(f"buffer_load_dwordx4 {a(A_CSP + 16 + 4 * k, 4)}, {v(V_L16)}, {srd(S_WS)}, {T0} offen offset:{1024 * k} sc1")
    seq += [
        f"s_lshl1_add_u32 {T1}, {s(S_I)}, {s(S_R)}",
        f"s_lshl_b32 {T1}, {T1}, 9",
        f"s_add_u32 {T0}, {T1}, {WS_NEGM}",
        f"v_lshlrev_b32 {va}, 2, {v(V_LANE)}",
        f"v_lshlrev_b32 {vb}, 5, {v(V_T)}",
        f"buffer_load_dword {a(A_NM)}, {va}, {srd(S_WS)}, {T0} offen sc1",
        f"buffer_load_dword {a(A_NM + 1)}, {va}, {srd(S_WS)}, {T0} offen offset:256 sc1",
        f"s_add_u32 {T0}, {T1}, {WS_SDT}",
        f"buffer_load_dwordx4 {v(V_SD, 4)}, {vb}, {srd(S_WS)}, {T0} offen sc1",
        f"buffer_load_dwordx4 {v(V_SD + 4, 4)}, {vb}, {srd(S_WS)}, {T0} offen offset:16 sc1",
    ]
    if typ == 0:
        seq += [f"s_lshr_b32 {T1}, {T1}, 1", f"s_add_u32 {T0}, {T1}, {WS_SD16}",
                f"v_and_b32 {vc}, 48, {v(V_LANE)}"]
        for k in range(4):
            seq.append(f"buffer_load_dwordx4 {a(A_SD16 + 4 * k, 4)}, {vc}, {srd(S_WS)}, {T0} offen offset:{64 * k} sc1")
    free = [g for g in range(160) if g % 16 >= 4]
    for k, ins in enumerate(seq):
        ex15[free[k]].append(ins)
    vp = v(V_XR)
    seq2 = [f"v_lshrrev_b32 {vp}, 2, {v(V_LANE)}", f"v_lshlrev_b32 {vp}, 6, {vp}",
            f"v_and_b32 {v(V_XR + 1)}, 3, {v(V_LANE)}", f"v_lshl_add_u32 {vp}, {v(V_XR + 1)}, 3, {vp}",
            f"s_lshl_b32 {T0}, {s(S_C)}, 11", f"s_add_u32 {T0}, {T0}, {L_PHI}", f"v_add_u32 {vp}, {T0}, {vp}"]
    for k, ins in enumerate(seq2):
        ex15[16 * 3 + 6 + k].append(ins)
    for fb in range(2):
        for h in range(2):
            ex15[16 * 4 + 4 + 2 * fb + h].append(
                f"ds_read_b64_tr_b16 {a(A_PHI + 4 * fb + 2 * h, 2)}, {vp} offset:{32 * fb + 1024 * h}")
    seq3 = [f"v_accvgpr_read_b32 {v(V_CSS + k)}, {a(A_CSP + k)}" for k in range(4)]
    for part in range(1, 8):
        seq3 += [f"v_accvgpr_read_b32 {v(V_SEL + k)}, {a(A_CSP + 4 * part + k)}" for k in range(4)]
        seq3 += [f"v_pk_add_f32 {v(V_CSS + 2 * k, 2)}, {v(V_CSS + 2 * k, 2)}, {v(V_SEL + 2 * k, 2)}" for k in range(2)]
    seq3 += [f"s_add_u32 {T0}, {s(S_MW)}, {L_CSX}", f"v_add_u32 {va}, {T0}, {v(V_L16)}",
             f"ds_write_b128 {va}, {v(V_CSS, 4)}"]
    late = [g for g in range(16 * 6 + 4, 160) if g % 16 >= 4 or g >= 144]
    for k, ins in enumerate(seq3):
        ex15[late[k]].append(ins)
    emit_step(A, typ, 1, "last", cfg, extra=ex15, vm=(len([x for x in seq if x.startswith("buffer_load")]), 0))


V_CS = 1


def mean_correction(A, typ):
    T0 = s(S_T0)
    va = v(V_DX)
    A(f"v_and_b32 {v(V_CSS)}, 15, {v(V_LANE)}")
    A(f"s_lshl_b32 {T0}, {s(S_C)}, 10")
    A(f"s_add_u32 {T0}, {T0}, {L_CSX}")
    A(f"v_lshl_add_u32 {v(V_CSS)}, {v(V_CSS)}, 4, {T0}")
    A.wait(lg=0)
    A("s_barrier")
    lo, hi = 2, 22
    A(f"ds_read_b128 {v(lo, 4)}, {v(V_CSS)}")
    A(f"ds_read_b128 {v(lo + 4, 4)}, {v(V_CSS)} offset:256")
    A(f"ds_read_b64 {v(lo + 8, 2)}, {v(V_CSS)} offset:512")
    A(f"ds_read_b128 {v(hi + 2, 4)}, {v(V_CSS)} offset:2048")
    A(f"ds_read_b128 {v(hi + 6, 4)}, {v(V_CSS)} offset:2304")
    A(f"ds_read_b64 {v(hi, 2)}, {v(V_CSS)} offset:2560")
    for k in range(4):
        A(f"v_pk_add_f32 {v(lo + 2 * k, 2)}, {v(lo + 2 * k, 2)}, {v(hi + 2 + 2 * k, 2)}")
    A(f"v_pk_add_f32 {v(lo + 8, 2)}, {v(lo + 8, 2)}, {v(hi, 2)}")


def corr_mfma(typ, j, q):
    k, b = acc_reg(typ, j, 4 * q)
    c = R(k, b, 16)
    cs, nm = v(2 + j), a(A_NM + q)
    if typ == 0 and j in (2, 3):
        return f"v_mfma_f32_16x16x1_4b_f32 {c}, {nm}, {cs}, {c}"
    return f"v_mfma_f32_16x16x1_4b_f32 {c}, {cs}, {nm}, {c}"
```

```python
from asmlib import v, a, s, R
from layout import *
from g1 import MFMA, srd, stamp, S_FX, S_F3
from epi import set_flag, poll_words, o_step_loads, o_step, f32, LOG2E, MP_STRIDE

V_D2 = 2
V_R2 = 4
V_PA, V_PD = 14, 15
V_XA, V_OA = 16, 17
V_DN = 96
V_S = 160
V_RC = 192
V_XR2 = 224
V_KB, V_TB = 160, 200
A_RING = 0
A_W2 = 128
A_TMP = 192

S_WOWN, S_WOTH, S_WWO = S_IT, S_TCS, S_CA
S_AH, S_AO = S_TAU, S_KX
S_MT, S_NT, S_K2H = S_KQ, S_KG, S_TP
S_SO2 = S_SO + 1
S_PF = S_RET

NPH = 18
BAR = 14


def setup_scalars(A):
    T0, T1 = s(S_T0), s(S_T1)
    A(f"s_and_b32 {s(S_K2H)}, s2, 1")
    A(f"s_bfe_u32 {T0}, s2, 0x20001")
    A(f"s_bfe_u32 {T1}, s2, 0x20003")
    A(f"s_lshl2_add_u32 {s(S_MT)}, {T0}, {T1}")
    A(f"s_lshr_b32 {s(S_NT)}, s2, 5")
    A(f"s_lshl_b32 {T0}, {s(S_NT)}, 8")
    A(f"s_lshl_b32 {T1}, {s(S_K2H)}, 7")
    A(f"s_add_u32 {s(S_WWO)}, {T0}, {T1}")
    A(f"s_mul_i32 {T0}, {s(S_K2H)}, {1792 * 2048}")
    A(f"s_add_u32 {s(S_WOWN)}, {s(S_WWO)}, {T0}")
    A(f"s_xor_b32 {s(S_WOTH)}, {s(S_WOWN)}, 128")
    A(f"s_lshl2_add_u32 {T0}, {s(S_MT)}, {s(S_WV)}")
    A(f"s_lshl_b32 {s(S_AO)}, {T0}, 16")
    A(f"s_add_u32 {s(S_AO)}, {s(S_AO)}, {WS_O}")
    A(f"s_mul_i32 {T0}, {T0}, {MP_STRIDE}")
    A(f"s_mul_i32 {T1}, {s(S_K2H)}, {56 * 2048}")
    A(f"s_add_u32 {s(S_AH)}, {T0}, {T1}")
    if WS_H:
        A(f"s_add_u32 {s(S_AH)}, {s(S_AH)}, {WS_H}")


def dma2(ph, pi):
    pre = [f"s_add_u32 m0, {s(S_MW)}, {(ph & 3) * 32768 + pi * 4096}"]
    if ph < 14:
        pre.append(f"s_add_u32 {s(S_SO)}, {s(S_WOTH if pi & 1 else S_WOWN)}, {(4 * ph + (pi >> 1)) * 65536}")
        sr = S_DOWN
    else:
        pre.append(f"s_add_u32 {s(S_SO)}, {s(S_WWO)}, {(8 * (ph - 14) + pi) * 65536}")
        sr = S_WO
    return pre, f"buffer_load_dwordx4 {v(V_D2)}, {srd(sr)}, {s(S_SO)} offen lds"


def prefill():
    L16 = v(V_L16)
    out = [f"v_bfe_u32 v3, {L16}, 8, 2", f"v_lshlrev_b32 v3, 5, v3", f"v_and_b32 v4, 0x70, {L16}",
           f"v_xor_b32 v3, v3, v4", f"v_lshrrev_b32 v4, 7, {L16}", f"v_lshl_add_u32 v3, v4, 11, v3",
           f"s_lshl_b32 {s(S_SO)}, {s(S_WV)}, 14", f"v_add_u32 {v(V_D2)}, {s(S_SO)}, v3"]
    for ph in range(4):
        for pi in range(8):
            pre, ld = dma2(ph, pi)

            def f(A, pre=pre, ld=ld, ph=ph):
                for p in pre:
                    A(p)
                A(ld, tag=f"w{ph}")
            out.append(f)
    return out


class Unit:
    def __init__(self, idx):
        self.idx = idx
        self.down = idx < 28
        self.comp = 24 <= idx < 28
        self.nb = 8 if self.down else 4
        self.ph = idx // 2 if self.down else 14 + (idx - 28) // 4
        self.inph = idx % 2 if self.down else (idx - 28) % 4
        self.slot = idx % 8

    def frag(self, sub, m):
        return A_RING + 16 * self.slot + 8 * sub + 4 * m

    def loads(self):
        base, off = (S_AH, self.idx * 4096) if self.down else (S_AO, (self.idx - 28) * 4096)
        pre = f"s_add_u32 {s(S_SO2)}, {s(base)}, {off}"
        return pre, [f"buffer_load_dwordx4 {a(A_RING + 16 * self.slot + 4 * k, 4)}, {v(V_L16)}, {srd(S_WS)}, {s(S_SO2)}"
                     f" offen offset:{1024 * k} sc1" for k in range(4)]

    def piece(self, sub, nb):
        if self.down:
            return 2 * (2 * self.inph + sub) + (nb >> 2)
        return 2 * self.inph + sub

    def acc(self, nb, m):
        return (V_DN if self.down else V_S) + 8 * nb + 4 * m


def w2_reads(u, nb, gidx):
    out = []
    ch = u.ph & 3
    for sub in range(2):
        dst = A_W2 + 8 * (gidx & 7) + 4 * sub
        off = (ch & 1) * 32768 + u.piece(sub, nb) * 4096
        base = V_R2 + 4 * (ch >> 1) + (nb & 3)
        out.append(f"ds_read_b64_tr_b16 {a(dst, 2)}, {v(base)} offset:{off}")
        out.append(f"ds_read_b64_tr_b16 {a(dst + 2, 2)}, {v(base)} offset:{off + 2048}")
    return out


def unswap(u):
    out = []
    for sub in range(2):
        f = u.frag(sub, 0)
        for k in range(2):
            out += [f"v_accvgpr_mov_b32 {a(A_TMP + k)}, {a(f + 2 + k)}"]
        for k in range(2):
            out += [f"v_accvgpr_mov_b32 {a(f + 2 + k)}, {a(f + 4 + k)}"]
        for k in range(2):
            out += [f"v_accvgpr_mov_b32 {a(f + 4 + k)}, {a(A_TMP + k)}"]
    return out


def wait_regs(A, regs):
    regs = set(regs)
    nv = nl = None
    for k in range(len(A.vm) - 1, -1, -1):
        if A.vm[k][0] & regs:
            nv = min(len(A.vm) - 1 - k, 63)
            break
    for k in range(len(A.lg) - 1, -1, -1):
        if A.lg[k][0] & regs:
            nl = min(len(A.lg) - 1 - k, 15)
            break
    if nv is not None or nl is not None:
        A.wait(vm=nv, lg=nl)


def gemm2(A, cfg, deferred):
    T0, T1 = s(S_T0), s(S_T1)
    L16 = v(V_L16)
    units = [Unit(k) for k in range(44)]
    A(f"v_bfe_u32 {v(V_PA)}, {L16}, 4, 3")
    A(f"v_lshlrev_b32 {v(V_PA)}, 2, {v(V_PA)}")
    A(f"s_lshr_b32 {T0}, {s(S_MT)}, 1")
    A(f"s_lshl1_add_u32 {T0}, {T0}, {s(S_K2H)}")
    A(f"s_lshl_b32 {T0}, {T0}, 7")
    A(f"s_add_u32 {s(S_PF)}, {T0}, {FL_H}")
    issue, finish = poll_words(A, deferred, "phb", V_PA, V_PD, S_PF)
    issue(A)
    A(f"v_lshrrev_b32 v18, 6, {L16}")
    A(f"v_lshlrev_b32 v18, 7, v18")
    A(f"v_bfe_u32 v19, {L16}, 4, 2")
    A(f"v_lshl_add_u32 v18, v19, 3, v18")
    A(f"v_bfe_u32 v19, {L16}, 7, 2")
    A(f"v_lshl_add_u32 {v(V_R2)}, v19, 5, v18")
    for b in range(1, 4):
        A(f"v_xor_b32 {v(V_R2 + b)}, {32 * b}, {v(V_R2)}")
    for b in range(4):
        A(f"v_add_u32 {v(V_R2 + 4 + b)}, 0x10000, {v(V_R2 + b)}")
    A(f"s_lshl2_add_u32 {T0}, {s(S_MT)}, {s(S_WV)}")
    A(f"s_lshl_b32 {T0}, {T0}, 16")
    A(f"s_add_u32 {T0}, {T0}, {s(S_WWO)}")
    A(f"v_bfe_u32 v18, {L16}, 4, 4")
    A(f"v_lshl_add_u32 v18, v18, 11, {T0}")
    A(f"v_lshrrev_b32 v19, 8, {L16}")
    A(f"v_lshl_add_u32 {v(V_XA)}, v19, 3, v18")
    A(f"v_and_b32 v20, 1, v19")
    A(f"v_lshl_add_u32 v18, v20, 5, v18")
    A(f"v_lshrrev_b32 v19, 1, v19")
    A(f"v_lshl_add_u32 {v(V_OA)}, v19, 4, v18")
    finish(A)
    stamp(A, cfg, 8)
    for u in units[:8]:
        pre, lds = u.loads()
        A(pre)
        for x in lds:
            A(x)
    A.wait(lg=0)
    A("s_barrier")

    groups = [(u, nb) for u in units for nb in range(u.nb)]
    nm = 4 * len(groups)
    gaps = {g: [] for g in range(-BAR - 1, nm)}
    ustart = {}
    for gi, (u, nb) in enumerate(groups):
        if nb == 0:
            ustart[u.idx] = 4 * gi
    bars = {}
    for ph in range(NPH):
        b = 64 * ph - BAR
        bars[b] = ph
        for k in range(64):
            gi = 16 * ph + k // 4
            u, nb = groups[gi]
            gaps[b + (k * 58) // 64].append(w2_reads(u, nb, gi)[k & 3])
    for ph in range(4, NPH):
        b = 64 * (ph - 3) - BAR
        for pi in range(8):
            pre, ld = dma2(ph, pi)
            g = b + 3 + 8 * pi
            gaps[g - 2].append(pre[0])
            gaps[g - 1].append(pre[1])
            gaps[g].append((ld, f"w{ph}"))
    for u in units[8:]:
        prev = units[u.idx - 7]
        g0, n = ustart[prev.idx], 4 * prev.nb
        pre, lds = u.loads()
        gaps[g0].append(pre)
        for k, x in enumerate(lds):
            gaps[g0 + 1 + k * (n // 4)].append(x)
    for u in units:
        if u.comp:
            g0 = ustart[u.idx] - 16
            regs = [("a", A_RING + 16 * u.slot + k) for k in range(16)]
            gaps[g0 - 1].append(lambda A, regs=regs: wait_regs(A, regs))
            for k, x in enumerate(unswap(u)):
                gaps[g0 + k].append(x)

    def poll_pair(name, setup, g_issue, g_finish):
        iss, fin = poll_words(A, deferred, name, V_PA, V_PD, S_PF)

        def first(A):
            for x in setup:
                A(x)
            iss(A)
        gaps[g_issue].append(first)
        gaps[g_finish].insert(0, fin)
    poll_pair("pha", [f"s_add_u32 {s(S_PF)}, {s(S_PF)}, 32"], ustart[4] + 6, ustart[9] - 1)
    poll_pair("po", [f"s_lshr_b32 {T0}, {s(S_MT)}, 1", f"s_lshl_b32 {T0}, {T0}, 7",
                     f"s_add_u32 {s(S_PF)}, {T0}, {FL_O}", f"v_bfe_u32 {v(V_PA)}, {L16}, 4, 4",
                     f"v_lshlrev_b32 {v(V_PA)}, 2, {v(V_PA)}"], ustart[17] + 6, ustart[21] - 1)

    def o_event(A):
        A(f"s_cmp_eq_u32 {s(S_TYP)}, 1")
        A(f"s_cbranch_scc1 L_ostep")
        A.label("L_ostep_done")

        def body(A):
            A.label("L_ostep")
            A(f"s_lshl_b32 {s(S_T2)}, {s(S_P)}, 7")
            A(f"s_add_u32 {s(S_T2)}, {s(S_T2)}, {FL_KF}")
            iss, fin = poll_words(A, deferred, "pkf", V_PA, 18, S_T2)
            iss(A)
            fin(A)
            o_step_loads(A, V_KB)
            o_step(A, V_KB, V_TB)
            A.wait(vm=0)
            set_flag(A, "fo", S_F3, 1, None)
            A.fence()
            A("s_branch L_ostep_done")
        deferred.append(body)
    gaps[ustart[cfg.get("o_unit", 10)] - 1].append(o_event)

    xs = ustart[28]
    gaps[xs + 2] += [f"s_lshl2_add_u32 {s(S_T2)}, s2, {s(S_WV)}", f"s_lshl_b32 {s(S_T2)}, {s(S_T2)}, 13"]
    gaps[xs + 3] += [f"s_add_u32 {s(S_T2)}, {s(S_T2)}, {WS_XCH}", f"s_add_u32 {s(S_T3)}, {s(S_T2)}, 4096"]
    for k in range(8):
        gaps[xs + 7 + 4 * k].append((f"buffer_store_dwordx4 {v(V_DN + 32 + 4 * k, 4)}, {L16}, {srd(S_WS)},"
                                     f" {s(S_T2 if k < 4 else S_T3)} offen offset:{1024 * (k & 3)} sc1", "xch"))
    for k in range(8):
        nb, m = k >> 1, k & 1
        if m:
            gaps[xs + 66 + 4 * k].append(f"s_mov_b32 {s(S_SPIN)}, 32768")
        gaps[xs + 67 + 4 * k].append(f"buffer_load_dwordx2 {v(V_XR2 + 2 * k, 2)}, {v(V_XA)}, {srd(S_X)},"
                                     f" {s(S_SPIN) if m else 0} offen offset:{32 * nb}")

    first = set()
    for g in range(-BAR - 1, nm):
        if g >= 0:
            gi, k = g // 4, g & 3
            u, nb = groups[gi]
            m, ss = k >> 1, k & 1
            sub = ss ^ m if cfg.get("snake") else ss
            if k == 0:
                regs = [("a", A_W2 + 8 * (gi & 7) + x) for x in range(8)]
                if nb == 0:
                    regs += [("a", A_RING + 16 * u.slot + x) for x in range(16)]
                wait_regs(A, regs)
            c = u.acc(nb, m)
            src = v(c, 4) if c in first else "0"
            first.add(c)
            A(f"{MFMA} {v(c, 4)}, {a(A_W2 + 8 * (gi & 7) + 4 * sub, 4)}, {a(u.frag(sub, m), 4)}, {src}")
            if cfg.get("stamps") and g in (0, 64 * 8, 64 * 14):
                stamp(A, cfg, {0: 9, 512: 10, 896: 11}[g])
        if g in bars and bars[g] > 0:
            ph = bars[g]
            A.wait_tag(f"w{ph}", lg=0)
            if ph == 16:
                A.wait_tag("xch")
                set_flag(A, "fx", S_FX, 1, None)
            else:
                A("s_barrier")
        for f in gaps[g]:
            if callable(f):
                f(A)
            elif isinstance(f, tuple):
                A(f[0], tag=f[1])
            else:
                A(f)
    stamp(A, cfg, 12)

    A(f"s_xor_b32 {s(S_PF)}, {s(S_FX)}, 128")
    A(f"v_mov_b32 {v(V_PA)}, 0")
    iss, fin = poll_words(A, deferred, "px", V_PA, V_PD, S_PF)
    iss(A)
    fin(A)
    A(f"s_xor_b32 {s(S_T2)}, {s(S_T2)}, 32768")
    A(f"s_xor_b32 {s(S_T3)}, {s(S_T3)}, 32768")
    for k in range(8):
        A(f"buffer_load_dwordx4 {v(V_RC + 4 * k, 4)}, {L16}, {srd(S_WS)}, {s(S_T2 if k < 4 else S_T3)}"
          f" offen offset:{1024 * (k & 3)} sc1")
    stamp(A, cfg, 13)
    A(f"s_mov_b32 {T0}, {f32(-LOG2E)}")
    A(f"s_mov_b32 {s(S_SPIN)}, 32768")
    T, X = 32, 48
    for m in range(2):
        for hb in range(2):
            qs = [8 * (2 * hb + n) + 4 * m for n in range(2)]
            prs = [(q + 2 * k, 4 * n + 2 * k) for n, q in enumerate(qs) for k in range(2)]
            for q, t in prs:
                A(f"v_pk_add_f32 {v(V_DN + q, 2)}, {v(V_DN + q, 2)}, {v(V_RC + q, 2)}")
            for q, t in prs:
                A(f"v_pk_mul_f32 {v(T + t, 2)}, {v(V_DN + q, 2)}, {s(S_T0, 2)} op_sel_hi:[1,0]")
            for k in range(8):
                A(f"v_exp_f32 {v(T + k)}, {v(T + k)}")
            for q, t in prs:
                A(f"v_pk_mul_f32 {v(V_S + q, 2)}, {v(V_S + q, 2)}, {v(V_DN + q, 2)}")
            for q, t in prs:
                A(f"v_pk_add_f32 {v(T + t, 2)}, {v(T + t, 2)}, 1.0 op_sel_hi:[1,0]")
            for k in range(8):
                A(f"v_rcp_f32 {v(T + k)}, {v(T + k)}")
            for q, t in prs:
                xr = V_XR2 + q // 2
                A(f"v_lshlrev_b32 {v(X + t)}, 16, {v(xr)}")
                A(f"v_and_b32 {v(X + t + 1)}, 0xffff0000, {v(xr)}")
            for q, t in prs:
                A(f"v_pk_fma_f32 {v(T + t, 2)}, {v(V_S + q, 2)}, {v(T + t, 2)}, {v(X + t, 2)}")
            o = 64 + 4 * (2 * m + hb)
            for k in range(4):
                A(f"v_cvt_pk_bf16_f32 {v(o + k)}, {v(T + 2 * k)}, {v(T + 2 * k + 1)}")
            A(f"v_permlane16_swap_b32 {v(o)}, {v(o + 2)}")
            A(f"v_permlane16_swap_b32 {v(o + 1)}, {v(o + 3)}")
            A(f"buffer_store_dwordx4 {v(o, 4)}, {v(V_OA)}, {srd(S_OUT)}, {s(S_SPIN) if m else 0} offen offset:{64 * hb}")
    stamp(A, cfg, 14)
```

```python
NAME = "recurrent_scan__linear_kernel_hedgehog__glu_gated_geglu__prompt"

WS_H = 0x0000000
WS_O = 0x0E00000
WS_XCH = 0x1200000
WS_KVP = 0x1A00000
WS_KVF = 0x1F00000
WS_CSP = 0x1F80000
WS_NEGM = 0x2080000
WS_SDT = 0x2082000
WS_SD16 = 0x2084000
WS_FL = 0x2090000
FL_CS = WS_FL + 0x0000
FL_H = WS_FL + 0x1000
FL_KV = WS_FL + 0x2000
FL_KF = WS_FL + 0x3000
FL_O = WS_FL + 0x4000
FL_X = WS_FL + 0x8000
WS_STAMP = 0x2100000
WS_BYTES = 0x10000000

L_W = 0
L_W_SUB = 40960
L_W_PAR = 20480
L_X = 81920
L_PHI = 147456
L_CSX = 151552
LDS_BYTES = 163840
L_RING2 = 0
L_TRS = 131072

S_X, S_QKV, S_GATE, S_UP, S_WS, S_DOWN, S_WO, S_OUT, S_DBG, S_PHI = 4, 8, 12, 16, 20, 24, 28, 32, 36, 40
S_WV, S_R, S_C, S_I, S_P, S_J, S_KH, S_PL, S_TYP = 44, 45, 46, 47, 48, 49, 50, 51, 52
S_IT, S_TCS, S_CA, S_TAU = 53, 54, 55, 56
S_KX, S_KQ, S_KG, S_TP = 57, 58, 59, 60
S_COL = 61
S_MW, S_MX, S_MC = 66, 67, 68
S_T0, S_T1, S_T2, S_T3 = 70, 71, 72, 73
S_SO = 74
S_RET = 76
S_SPIN = 78
S_E0 = 80
S_STAMP = 96

V_LANE = 0
V_XR = 1
V_WR = 3
V_CR = 7
V_DX, V_DQ, V_DG, V_DC = 9, 10, 11, 12
V_L16 = 13
V_T = 14
V_SEL = 28
V_ACC = 32
A_ACC = 0
A_X = 96
A_W = 224
A_CS = 240
A_PHI = 244
A_NM = 252

AGPR_BLOCKS = {0: (6, 7, 9), 1: (0, 1, 9)}


def acc_reg(typ, j, mb):
    ab = AGPR_BLOCKS[typ]
    if j in ab:
        return "a", A_ACC + 32 * ab.index(j) + 4 * mb
    k = [x for x in range(10) if x not in ab].index(j)
    return "v", V_ACC + 32 * k + 4 * mb
```

```python
import sys
from asmlib import Asm
from layout import *
import g1, epi, g2


def generate(cfg):
    A = Asm()
    deferred = []
    hdr = open(f"cdna_kernels/{NAME}.s.ref").read().split("; Override launch geometry")[0]
    A.raw(hdr.rstrip())
    A.raw(f"; @launch grid=(256,1,1) block=(256,1,1) lds={LDS_BYTES}")
    A.raw('.amdgcn_target "amdgcn-amd-amdhsa--gfx950"')
    A.raw(".text")
    A.raw(f".globl {NAME}_kernel")
    A.raw(".p2align 8")
    A.raw(f".type {NAME}_kernel,@function")
    A.label(f"{NAME}_kernel")
    g1.prologue(A, cfg)
    st = A.state()
    for typ in (0, 1):
        if typ == 1:
            A.label("L_typeB")
            A.set_state(st)
        g1.prologue_type(A, typ, cfg)
        g1.main_loop(A, typ, cfg, deferred)
        g1.stamp(A, cfg, 3)
        g2.setup_scalars(A)
        g1.mean_correction(A, typ)
        g1.stamp(A, cfg, 4)
        (epi.epilogue_a if typ == 0 else epi.epilogue_b)(A, cfg, deferred, g2.prefill())
        A.wait(vm=0, lg=0)
        A.fence()
        if typ == 0:
            A("s_branch L_g2")
    A.label("L_g2")
    g2.gemm2(A, cfg, deferred)
    A.label("L_exit")
    A("s_endpgm")
    k = 0
    while k < len(deferred):
        A.set_state(([], [], []))
        deferred[k](A)
        k += 1
    A.raw('.section .rodata,"a"')
    A.raw(".p2align 6")
    A.raw(f".amdhsa_kernel {NAME}_kernel")
    A.raw("  .amdhsa_next_free_vgpr 512\n  .amdhsa_next_free_sgpr 102\n  .amdhsa_accum_offset 256")
    A.raw("  .amdhsa_group_segment_fixed_size 0\n  .amdhsa_kernarg_size 88\n  .amdhsa_user_sgpr_count 2")
    A.raw("  .amdhsa_user_sgpr_kernarg_segment_ptr 1\n  .amdhsa_system_sgpr_workgroup_id_x 1")
    A.raw(".end_amdhsa_kernel")
    return A


if __name__ == "__main__":
    out = sys.argv[1]
    cfg = {}
    for kv in sys.argv[2:]:
        k, _, val = kv.partition("=")
        cfg[k] = int(val) if val else 1
    A = generate(cfg)
    open(out, "w").write(A.text())
    print("lines", len(A.out), "nops", A.nops, "autowaits", A.autowaits)
```
